```python
import torch

def _softmax(x, axis=-1):
    return torch.softmax(x, dim=axis)
def _gelu(x):
    return torch.nn.functional.gelu(x, approximate="tanh")
def _silu(x):
    return torch.nn.functional.silu(x)
def _sigmoid(x):
    return torch.sigmoid(x)
def _layernorm(x, axis=-1, eps=1e-5):
    m = x.mean(dim=axis, keepdim=True)
    v = x.var(dim=axis, keepdim=True, unbiased=False)
    return (x - m) / torch.sqrt(v + eps)
def _scatter_add(tgt, idx, src, axis=0):
    return tgt.clone().index_add_(axis, idx, src)
def _segment_sum(src, seg, n):
    out = torch.zeros((n,) + src.shape[1:], dtype=src.dtype)
    return out.index_add_(0, seg, src)
def _pad(x, pw):
    flat = tuple(v for pair in reversed(pw) for v in pair)
    return torch.nn.functional.pad(x, flat)

kernel_name = 'sequential_preLN__grouped_kv_mqa__dense_activation_mish__prompt'

def setup_inputs():

    _w = (lambda a: (lambda t: t.to(torch.bfloat16) if t.is_floating_point() else t)(torch.as_tensor(a)))
    def _A_setup():
        B, S, D, H = 1, 2048, 512, 32
        Dh = D // H
        return {
            "x": _w((lambda *s: torch.randn(*s, dtype=torch.bfloat16) * 0.05)(B, S, D)),
            "wq": _w((lambda *s: torch.randn(*s, dtype=torch.bfloat16) * 0.05)(D, H * Dh)),
            "wk": _w((lambda *s: torch.randn(*s, dtype=torch.bfloat16) * 0.05)(D, Dh)),
            "wv": _w((lambda *s: torch.randn(*s, dtype=torch.bfloat16) * 0.05)(D, Dh)),
            "wo": _w((lambda *s: torch.randn(*s, dtype=torch.bfloat16) * 0.05)(H * Dh, D)),
        }
    _A_in = _A_setup()

    def _B_setup():
        B, S, D, F = 1, 2048, 512, 1792
        return {
            "x": _w((lambda *s: torch.randn(*s, dtype=torch.bfloat16) * 0.05)(B, S, D)),
            "w1": _w((lambda *s: torch.randn(*s, dtype=torch.bfloat16) * 0.8)(D, F) * (D ** -0.5)),
            "b1": _w((lambda *s: torch.randn(*s, dtype=torch.bfloat16) * 0.4)(F)),
            "w2": _w((lambda *s: torch.randn(*s, dtype=torch.bfloat16) * 0.2)(F, D) * (F ** -0.5)),
        }
    _B_in = _B_setup()

    return {
        "A_x": _A_in["x"],
        "A_wq": _A_in["wq"],
        "A_wk": _A_in["wk"],
        "A_wv": _A_in["wv"],
        "A_wo": _A_in["wo"],
        "B_x": _B_in["x"],
        "B_w1": _B_in["w1"],
        "B_b1": _B_in["b1"],
        "B_w2": _B_in["w2"],
    }

def reference(A_x, A_wq, A_wk, A_wv, A_wo, B_x, B_w1, B_b1, B_w2):
    def _A_ref(x, wq, wk, wv, wo):
        B, S, D = x.shape
        H = 32
        Dh = D // H
        q = (lambda x, *d: x.permute(*d))((x @ wq).reshape(B, S, H, Dh), 0, 2, 1, 3)
        k = x @ wk
        v = x @ wv
        scores = torch.einsum("bhqd,bkd->bhqk", q, k) * (Dh ** -0.5)
        p = _softmax(scores, axis=-1)
        o = torch.einsum("bhqk,bkd->bhqd", p, v)
        return (lambda x, *d: x.permute(*d))(o, 0, 2, 1, 3).reshape(B, S, H * Dh) @ wo

    def _B_ref(x, w1, b1, w2):
        h = torch.einsum("bsd,df->bsf", x, w1) + b1
        sp = torch.log1p(torch.exp(-torch.abs(h))) + torch.where(h > 0, h, torch.zeros_like(h))
        act = h * torch.tanh(sp)
        return torch.einsum("bsf,fd->bsd", act, w2)

    x = A_x
    h = x + _A_ref(_layernorm(x, axis=-1), A_wq, A_wk, A_wv, A_wo)
    h2 = h + _B_ref(_layernorm(h, axis=-1), B_w1, B_b1, B_w2)
    return h2
```

```python
import re

TRANS = ("v_exp_f32", "v_log_f32", "v_rcp_f32", "v_rsq_f32", "v_sqrt_f32", "v_sin_f32", "v_cos_f32",
         "v_exp_f16", "v_rcp_f16")

def _regs(tok):
    tok = tok.strip()
    m = re.fullmatch(r"([vsa])\[(\d+):(\d+)\]", tok)
    if m:
        k = 'v' if m.group(1) in 'va' else 's'
        return [(k, i) for i in range(int(m.group(2)), int(m.group(3)) + 1)]
    m = re.fullmatch(r"([vsa])(\d+)", tok)
    if m:
        k = 'v' if m.group(1) in 'va' else 's'
        return [(k, int(m.group(2)))]
    if tok in ("vcc", "vcc_lo", "vcc_hi"):
        return [('x', 'vcc')]
    if tok in ("exec", "exec_lo", "exec_hi"):
        return [('x', 'exec')]
    if tok == "m0":
        return [('x', 'm0')]
    return []

class Ins:
    __slots__ = ("text", "op", "ops", "mods", "dst", "src", "kind", "passes", "srcA", "srcB", "srcC",
                 "label", "target", "data", "wide", "is_trans", "is_dot", "dpp", "lds_dma", "sdwa")
    def __init__(self, text):
        self.text = text
        t = text.split(";")[0].strip()
        self.label = None; self.target = None
        self.dst = []; self.src = []; self.kind = "other"; self.passes = 0
        self.srcA = self.srcB = self.srcC = []
        self.data = []; self.wide = False; self.is_trans = False; self.is_dot = False
        self.dpp = False; self.lds_dma = False; self.sdwa = False
        if t.endswith(":"):
            self.label = t[:-1]; self.kind = "label"; self.op = ""; return
        if t == "" or t.startswith("."):
            self.kind = "directive"; self.op = ""; return
        parts = t.split(None, 1)
        self.op = op = parts[0]
        rest = parts[1] if len(parts) > 1 else ""
        brmods = re.findall(r"\b[a-z_]+:\[[^\]]*\]", rest)
        rest2 = re.sub(r"\b[a-z_]+:\[[^\]]*\]", "", rest)
        toks = [x.strip() for x in rest2.split(",")] if rest2.strip() else []
        mods = ""
        if toks:
            last = toks[-1].split(None, 1)
            toks[-1] = last[0]
            mods = last[1] if len(last) > 1 else ""
        mods = mods + " " + " ".join(brmods)
        self.ops = toks; self.mods = mods
        full = rest
        R = lambda i: _regs(toks[i]) if i < len(toks) else []
        if op.startswith("v_mfma"):
            self.kind = "mfma"
            self.passes = 8 if "32x32" in op else 4
            self.dst = R(0); self.srcA = R(1); self.srcB = R(2); self.srcC = R(3)
            self.src = self.srcA + self.srcB + self.srcC
        elif op.startswith("v_"):
            self.kind = "valu"
            base = op.replace("_e32", "").replace("_e64", "").replace("_dpp", "").replace("_sdwa", "")
            self.dpp = ("_dpp" in op) or ("row_" in full) or ("quad_perm" in full)
            self.sdwa = "_sdwa" in op
            self.is_trans = base in TRANS
            self.is_dot = base.startswith("v_dot")
            allsrc = []
            if base.startswith("v_permlane"):
                self.dst = R(0) + R(1); self.src = R(0) + R(1); self.kind = "permlane"
            elif base.startswith("v_readfirstlane") or base.startswith("v_readlane"):
                self.dst = R(0); self.src = R(1) + R(2); self.kind = "readlane"
            elif base.startswith("v_cmp"):
                self.dst = R(0)
                for i in range(1, len(toks)): allsrc += R(i)
                self.src = allsrc
            else:
                self.dst = R(0)
                for i in range(1, len(toks)): allsrc += R(i)
                if base.startswith("v_dot2c") or base.startswith("v_fmac") or base.startswith("v_pk_fmac"):
                    allsrc += R(0)
                if base.startswith("v_cndmask") and len(toks) == 3:
                    allsrc += [('x', 'vcc')]
                if self.dpp:
                    allsrc += R(0)
                self.src = allsrc
        elif op.startswith("ds_"):
            self.kind = "ds"
            if op.startswith("ds_read") or op.startswith("ds_swizzle") or op.startswith("ds_bpermute"):
                self.dst = R(0)
                for i in range(1, len(toks)): self.src += R(i)
            else:
                for i in range(len(toks)): self.src += R(i)
        elif op.startswith("buffer_") or op.startswith("global_"):
            self.kind = "vmem"
            self.lds_dma = (" lds" in (" " + mods)) or ("_lds_" in op)
            if op.startswith("buffer_load") and not self.lds_dma:
                self.dst = R(0)
                for i in range(1, len(toks)): self.src += R(i)
            elif op.startswith("buffer_load"):
                for i in range(len(toks)): self.src += R(i)
                self.src += [('x', 'm0')]
            elif op.startswith("buffer_store") or op.startswith("buffer_atomic"):
                self.data = R(0)
                self.wide = ("x3" in op or "x4" in op)
                for i in range(len(toks)): self.src += R(i)
            else:
                raise ValueError("unsupported vmem " + text)
        elif op.startswith("s_"):
            self.kind = "salu"
            if op in ("s_branch",) or op.startswith("s_cbranch"):
                self.kind = "branch"; self.target = toks[0]
            elif op.startswith("s_cmp") or op in ("s_waitcnt", "s_barrier", "s_nop", "s_sleep", "s_setprio",
                                                  "s_endpgm", "s_bitcmp1_b32", "s_bitcmp0_b32"):
                for i in range(len(toks)): self.src += R(i)
            else:
                self.dst = R(0)
                for i in range(1, len(toks)): self.src += R(i)
                if "saveexec" in op:
                    self.dst += [('x', 'exec')]
        else:
            raise ValueError("unknown op " + text)

    def slots(self):
        if self.kind in ("label", "directive"): return 0
        if self.op == "s_nop": return int(self.ops[0], 0) + 1
        return 1

class HState:
    def __init__(self):
        self.ev = {}
        self.now = 0
    def copy(self):
        h = HState(); h.ev = dict(self.ev); h.now = self.now; return h
    def merge(self, other):
        for k, (sl, ex) in other.ev.items():
            age = other.now - sl
            ns = self.now - age
            if k not in self.ev or self.ev[k][0] < ns:
                self.ev[k] = (ns, ex)
    def need(self, ins):
        req = 0
        def chk(key, ws):
            nonlocal req
            if key in self.ev:
                sl, ex = self.ev[key]
                dist = self.now - sl - 1
                if ws - dist > req: req = ws - dist
        def ev(key): return self.ev.get(key)
        if ins.kind == "mfma":
            for r in ins.src:
                if r[0] == 'v': chk(('valuw', r), 2)
            for r in ins.srcA + ins.srcB:
                e = ev(('mfmaw', r))
                if e: chk(('mfmaw', r), 8 if e[1][0] == 4 else 12)
            for r in ins.srcC:
                e = ev(('mfmaw', r))
                if e:
                    p, rng = e[1]
                    if not (rng == tuple(ins.srcC) and p == ins.passes):
                        chk(('mfmaw', r), 6 if p == 4 else 10)
            for r in ins.dst:
                e = ev(('mfmaw', r))
                if e and r not in ins.srcC:
                    p, rng = e[1]
                    chk(('mfmaw', r), 6 if p == 4 else 10)
            chk(('valuw', ('x', 'exec')), 4)
        if ins.kind in ("valu", "permlane", "readlane"):
            for r in ins.src + ins.dst:
                if r[0] == 'v':
                    e = ev(('mfmaw', r))
                    if e: chk(('mfmaw', r), 8 if e[1][0] == 4 else 12)
            for r in ins.dst:
                if r[0] == 'v':
                    e = ev(('mfmac', r))
                    if e: chk(('mfmac', r), 3 if e[1] == 4 else 7)
                    chk(('widest', r), 2)
            for r in ins.src:
                if r[0] == 'v':
                    if not ins.is_trans: chk(('transw', r), 1)
                    chk(('sdwaw', r), 1)
                if r[0] == 's' or r == ('x', 'vcc'):
                    chk(('valuw', r), 4 if ins.kind == "readlane" else 2)
            for r in ins.src + ins.dst:
                if r[0] == 'v':
                    e = ev(('dotw', r))
                    if e:
                        same = ins.is_dot and e[1] == ins.op and r in ins.dst
                        if not same: chk(('dotw', r), 3)
            if ins.kind == "permlane" or ins.dpp:
                for r in ins.src:
                    if r[0] == 'v': chk(('valuw', r), 2)
                chk(('valuw', ('x', 'exec')), 5)
            if ins.kind == "readlane":
                for r in ins.src:
                    if r[0] == 'v': chk(('valuw', r), 1)
        if ins.kind in ("ds", "vmem"):
            for r in ins.src + ins.dst:
                if r[0] == 'v':
                    e = ev(('mfmaw', r))
                    if e: chk(('mfmaw', r), 8 if e[1][0] == 4 else 12)
                    e = ev(('dotw', r))
                    if e: chk(('dotw', r), 3)
                    chk(('transw', r), 1)
            for r in ins.dst:
                if r[0] == 'v':
                    chk(('widest', r), 1)
                    e = ev(('mfmac', r))
                    if e: chk(('mfmac', r), 3 if e[1] == 4 else 7)
            if ins.kind == "vmem":
                for r in ins.src:
                    if r[0] == 's': chk(('valuw', r), 5)
                if ins.lds_dma: chk(('saluw', ('x', 'm0')), 1)
        if ins.kind == "salu" or ins.kind == "branch":
            for r in ins.src:
                if r[0] == 's' or r == ('x', 'vcc'): chk(('valuw', r), 1)
            if ins.kind == "branch" and ("vcc" in ins.op): chk(('valuw', ('x', 'vcc')), 5)
        return req
    def apply(self, ins):
        n = ins.slots()
        if n == 0: return
        sl = self.now
        if ins.kind == "mfma":
            for r in ins.dst:
                self.ev[('mfmaw', r)] = (sl, (ins.passes, tuple(ins.dst)))
                self.ev.pop(('valuw', r), None); self.ev.pop(('transw', r), None); self.ev.pop(('dotw', r), None)
            for r in ins.srcC:
                self.ev[('mfmac', r)] = (sl, ins.passes)
        elif ins.kind in ("valu", "permlane", "readlane"):
            for r in ins.dst:
                self.ev[('valuw', r)] = (sl, None)
                self.ev.pop(('mfmaw', r), None)
                if ins.is_trans: self.ev[('transw', r)] = (sl, None)
                else: self.ev.pop(('transw', r), None)
                if ins.is_dot: self.ev[('dotw', r)] = (sl, ins.op)
                else: self.ev.pop(('dotw', r), None)
                if ins.sdwa or "op_sel" in ins.mods and not ins.op.startswith("v_pk"): self.ev[('sdwaw', r)] = (sl, None)
        elif ins.kind == "vmem":
            if ins.wide:
                for r in ins.data: self.ev[('widest', r)] = (sl, None)
            for r in ins.dst:
                for k in ('valuw', 'mfmaw', 'transw', 'dotw'): self.ev.pop((k, r), None)
        elif ins.kind == "ds":
            for r in ins.dst:
                for k in ('valuw', 'mfmaw', 'transw', 'dotw'): self.ev.pop((k, r), None)
        elif ins.kind == "salu":
            for r in ins.dst:
                if r == ('x', 'm0'): self.ev[('saluw', r)] = (sl, None)
                self.ev.pop(('valuw', r), None)
        self.now += n
        if len(self.ev) > 4000:
            self.ev = {k: v for k, v in self.ev.items() if self.now - v[0] < 32}

def fix_hazards(lines, verbose=False):
    ins = [Ins(l) for l in lines]
    labels = {i.label: k for k, i in enumerate(ins) if i.kind == "label"}
    out = []
    st = HState()
    pending = {}
    nnop = 0
    def emit_nop(n, st):
        nonlocal nnop
        while n > 0:
            k = min(n, 16)
            t = Ins(f"    s_nop {k-1}")
            out.append(t.text); st.apply(t); n -= k; nnop += k
    for k, i in enumerate(ins):
        if i.kind == "label":
            for ps in pending.pop(i.label, []):
                st.merge(ps)
            out.append(i.text); continue
        if i.kind == "directive":
            out.append(i.text); continue
        n = st.need(i)
        if n > 0: emit_nop(n, st)
        if i.kind == "branch":
            tgt = labels.get(i.target)
            if tgt is None: raise ValueError("no label " + i.target)
            if tgt > k:
                s2 = st.copy(); s2.apply(i)
                pending.setdefault(i.target, []).append(s2)
            else:
                while True:
                    s2 = st.copy(); s2.apply(i)
                    worst = 0; cnt = 0
                    for jn in ins[tgt:]:
                        if jn.kind in ("label", "directive"): continue
                        nd = s2.need(jn)
                        if nd > 0:
                            worst = max(worst, nd); break
                        s2.apply(jn); cnt += jn.slots()
                        if cnt > 24 or jn.kind == "branch": break
                    if worst == 0: break
                    before = worst
                    emit_nop(worst, st)
                    s3 = st.copy(); s3.apply(i)
                    w2 = 0; cnt = 0
                    for jn in ins[tgt:]:
                        if jn.kind in ("label", "directive"): continue
                        nd = s3.need(jn)
                        if nd > 0: w2 = nd; break
                        s3.apply(jn); cnt += jn.slots()
                        if cnt > 24 or jn.kind == "branch": break
                    if w2 >= before:
                        break
        out.append(i.text); st.apply(i)
        if i.op in ("s_branch", "s_endpgm"):
            st = HState(); st.now = 0
    if verbose: print("inserted wait states:", nnop)
    return out

class Gen:
    def __init__(self):
        self.lines = []
        self.uid = 0
    def __call__(self, text):
        for l in text.split("\n"):
            l = l.strip()
            if not l: continue
            if l.endswith(":") or l.startswith("."):
                self.lines.append(l)
            else:
                self.lines.append("    " + l)
    def lab(self, base="L"):
        self.uid += 1
        return f"{base}_{self.uid}"
    def comment(self, t):
        self.lines.append("    ; " + t)

def vr(a, n=1):
    return f"v{a}" if n == 1 else f"v[{a}:{a+n-1}]"
def sr(a, n=1):
    return f"s{a}" if n == 1 else f"s[{a}:{a+n-1}]"
```

```python
import sys
sys.path.insert(0, 'gen')
from asmfw import *

NAME = "sequential_preLN__grouped_kv_mqa__dense_activation_mish__prompt"
KF = 0x0; VF = 0x10000; QMAX = 0x20000; KMAX = 0x21000; FLAGS = 0x22000
QF = 0x100000; WOF = 0x300000; W1F = 0x400000; W2F = 0x600000
HN = 0x800000; HB = 0xA00000; ACT = 0xC00000
WS_SIZE = 0x1300000
LOG2E = 1.4426950408889634

import struct
def f32(x):
    return "0x%08x" % struct.unpack("<I", struct.pack("<f", x))[0]

def srd(g, d, base, size):
    g(f"s_mov_b32 s{d}, s{base}")
    g(f"s_mov_b32 s{d+1}, s{base+1}")
    g(f"s_mov_b32 s{d+2}, {hex(size)}")
    g(f"s_mov_b32 s{d+3}, 0x00020000")

def ids(g, sw=3, sg=40, sj=41, tmp=42, vlane=1):
    g(f"v_lshrrev_b32 v2, 6, v0")
    g(f"v_and_b32 v{vlane}, 63, v0")
    g(f"v_readfirstlane_b32 s{sw}, v2")
    g(f"s_and_b32 s{sg}, s2, 7")
    g(f"s_lshr_b32 s{tmp}, s2, 6")
    g(f"s_lshl_b32 s{tmp}, s{tmp}, 3")
    g(f"s_or_b32 s{sg}, s{sg}, s{tmp}")
    g(f"s_lshr_b32 s{sj}, s2, 3")
    g(f"s_and_b32 s{sj}, s{sj}, 7")

def kernel_text(label, body_lines, first=False):
    out = []
    out.append(f".globl {label}")
    out.append(".p2align 8")
    out.append(f".type {label},@function")
    out.append(f"{label}:")
    out += fix_hazards(body_lines, verbose=True)
    return out

def desc_text(label, vgpr=256, sgpr=102):
    acc = (vgpr + 3) // 4 * 4
    return [".p2align 6",
            f".amdhsa_kernel {label}",
            f"  .amdhsa_next_free_vgpr {vgpr}",
            f"  .amdhsa_next_free_sgpr {sgpr}",
            f"  .amdhsa_accum_offset {acc}",
            "  .amdhsa_group_segment_fixed_size 0",
            "  .amdhsa_kernarg_size 96",
            "  .amdhsa_user_sgpr_count 2",
            "  .amdhsa_user_sgpr_kernarg_segment_ptr 1",
            "  .amdhsa_system_sgpr_workgroup_id_x 1",
            ".end_amdhsa_kernel"]

def wave_max16x4(g, v, t):
    for r in (8, 4, 2, 1):
        g(f"v_max_f32_dpp v{v}, v{v}, v{v} row_ror:{r} row_mask:0xf bank_mask:0xf")
    g(f"v_mov_b32 v{t}, v{v}")
    g(f"v_permlane16_swap_b32 v{v}, v{t}")
    g(f"v_max_f32 v{v}, v{v}, v{t}")
    g(f"v_mov_b32 v{t}, v{v}")
    g(f"v_permlane32_swap_b32 v{v}, v{t}")
    g(f"v_max_f32 v{v}, v{v}, v{t}")

STAMP_OFF = 0x80000
class Stamps:
    def __init__(self, g, on): self.g = g; self.on = on; self.n = 0
    def __call__(self):
        if not self.on: return
        self.g(f"s_memtime s[{70+2*self.n}:{71+2*self.n}]"); self.n += 1
    def flush(self, srd=36, kid=0):
        if not self.on: return
        g = self.g
        g("s_mov_b64 exec, 1")
        g("s_waitcnt lgkmcnt(0)")
        g("s_lshl_b32 s98, s2, 3"); g("s_add_u32 s98, s98, s3"); g("s_lshl_b32 s98, s98, 6")
        g(f"s_add_u32 s98, s98, {STAMP_OFF + kid*0x20000}")
        g("v_mov_b32 v2, 0")
        for i in range(self.n):
            g(f"v_mov_b32 v3, s{70+2*i}")
            g(f"buffer_store_dword v3, v2, s[{srd}:{srd+3}], s98 offen offset:{4*i}")
        g("s_waitcnt vmcnt(0)")
```

```python
from common import *

def gen_k1(label):
    g = Gen()
    X_L = 0; WQ_L = 65536; WKV_L = 131072; ST_L = 147456; CS_L = ST_L + 512
    LDS = CS_L + 256
    END = "K1_END"
    g(f"s_cmp_ge_u32 s2, 256")
    g(f"s_cbranch_scc1 {END}")
    g("s_load_dwordx4 s[4:7], s[0:1], 0")
    g("s_load_dwordx4 s[8:11], s[0:1], 16")
    g("s_load_dwordx2 s[12:13], s[0:1], 32")
    g("s_load_dwordx2 s[14:15], s[0:1], 48")
    g("s_load_dwordx2 s[16:17], s[0:1], 64")
    g("s_load_dwordx2 s[18:19], s[0:1], 88")
    ids(g)
    g("s_and_b32 s42, s3, 1")
    g("s_lshl_b32 s43, s42, 3")
    g("v_xor_b32 v10, s43, v1")
    g("v_lshlrev_b32 v10, 4, v10")
    for i in range(1, 8):
        g(f"v_xor_b32 v{10+i}, {i<<4}, v10")
    g("v_lshrrev_b32 v18, 2, v1")
    g("v_lshlrev_b32 v18, 10, v18")
    g("v_and_b32 v19, 3, v1")
    g("v_lshlrev_b32 v19, 4, v19")
    g("v_or_b32 v18, v18, v19")
    g("v_lshlrev_b32 v19, 4, v1")
    g("s_lshl_b32 s43, s3, 13")
    g("s_lshl_b32 s44, s40, 16")
    g("s_add_u32 s44, s44, s43")
    g("s_waitcnt lgkmcnt(0)")
    srd(g, 20, 4, 0x200000)
    srd(g, 24, 6, 0x80000)
    srd(g, 36, 18, WS_SIZE)
    g("s_mov_b32 m0, s43")
    for i in range(4):
        g(f"buffer_load_dwordx4 v{10+i}, s[20:23], s44 offen offset:{i*1024} lds")
    g("s_add_u32 s45, s43, 4096")
    g("s_mov_b32 m0, s45")
    g("s_add_u32 s44, s44, 4096")
    for i in range(4):
        g(f"buffer_load_dwordx4 v{14+i}, s[20:23], s44 offen offset:{i*1024} lds")
    g("s_lshr_b32 s45, s3, 1")
    g("s_lshl_b32 s46, s45, 13")
    g("s_lshl_b32 s47, s42, 15")
    g("s_add_u32 s46, s46, s47")
    g(f"s_add_u32 s46, s46, {WQ_L}")
    g("s_lshl_b32 s47, s45, 17")
    g("s_lshl_b32 s48, s41, 7")
    g("s_add_u32 s47, s47, s48")
    g("s_lshl_b32 s48, s42, 6")
    g("s_add_u32 s47, s47, s48")
    for i in range(8):
        g("s_mov_b32 m0, s46")
        if i < 7:
            g("s_add_u32 s46, s46, 1024")
        g("buffer_load_dwordx4 v18, s[24:27], s47 offen lds")
        if i < 7:
            g("s_add_u32 s47, s47, 16384")
    g("s_and_b32 s45, s41, 1")
    g("s_cmp_eq_u32 s45, 0")
    g("s_cselect_b32 s28, s8, s10")
    g("s_cselect_b32 s29, s9, s11")
    g("s_mov_b32 s30, 0x4000")
    g("s_mov_b32 s31, 0x00020000")
    g("s_lshl_b32 s45, s3, 11")
    g(f"s_add_u32 s46, s45, {WKV_L}")
    g("s_mov_b32 m0, s46")
    g("s_nop 0")
    g("buffer_load_dwordx4 v19, s[28:31], s45 offen lds")
    g("buffer_load_dwordx4 v19, s[28:31], s45 offen offset:1024 lds")
    g("s_lshl_b32 s45, s2, 3")
    g("s_add_u32 s45, s45, s3")
    LW2 = "K1_W2"; LWO = "K1_WO"; LGO = "K1_G"
    g("v_and_b32 v20, 31, v1")
    g("v_lshlrev_b32 v20, 2, v20")
    g("v_lshrrev_b32 v21, 5, v1")
    g("s_cmp_ge_u32 s45, 1792")
    g(f"s_cbranch_scc1 {LWO}")
    g("s_cmp_ge_u32 s45, 896")
    g(f"s_cbranch_scc1 {LW2}")
    srd(g, 32, 14, 512*1792*2)
    g("s_lshr_b32 s46, s45, 5")
    g("s_and_b32 s47, s45, 31")
    g(f"s_mul_i32 s48, s47, {16*3584}")
    g("s_lshl_b32 s49, s46, 7")
    g("s_add_u32 s48, s48, s49")
    for jj in range(1, 8):
        g(f"s_add_u32 s{48+jj}, s48, {jj*3584}")
    g(f"s_mov_b32 s58, {8*3584}")
    g("v_mul_lo_u32 v21, v21, s58")
    g("v_add_u32 v20, v20, v21")
    g("s_lshl_b32 s56, s46, 16")
    g("s_lshl_b32 s57, s47, 10")
    g("s_add_u32 s56, s56, s57")
    g(f"s_add_u32 s56, s56, {W1F}")
    g(f"s_add_u32 s57, s56, {32*1024}")
    g(f"s_branch {LGO}")
    g(f"{LW2}:")
    srd(g, 32, 16, 1792*512*2)
    g("s_sub_u32 s45, s45, 896")
    g("s_lshr_b32 s46, s45, 3")
    g("s_and_b32 s47, s45, 7")
    g("s_lshr_b32 s48, s46, 2")
    g("s_lshl_b32 s48, s48, 6")
    g("s_and_b32 s49, s46, 1")
    g("s_lshl_b32 s49, s49, 5")
    g("s_add_u32 s48, s48, s49")
    g("s_lshr_b32 s49, s46, 1")
    g("s_and_b32 s49, s49, 1")
    g("s_add_u32 s48, s48, s49")
    g("s_lshl_b32 s48, s48, 10")
    g("s_lshl_b32 s49, s47, 7")
    g("s_add_u32 s48, s48, s49")
    for jj in range(1, 8):
        g(f"s_add_u32 s{48+jj}, s48, {(16*(jj>>2) + 2*(jj&3))*1024}")
    g("v_lshlrev_b32 v21, 13, v21")
    g("v_add_u32 v20, v20, v21")
    g("s_mul_i32 s56, s47, 112")
    g("s_add_u32 s56, s56, s46")
    g("s_lshl_b32 s56, s56, 11")
    g(f"s_add_u32 s56, s56, {W2F}")
    g("s_add_u32 s57, s56, 1024")
    g(f"s_branch {LGO}")
    g(f"{LWO}:")
    srd(g, 32, 12, 0x80000)
    g("s_sub_u32 s45, s45, 1792")
    g("s_lshr_b32 s46, s45, 4")
    g("s_and_b32 s47, s45, 15")
    g("s_lshl_b32 s48, s46, 15")
    g("s_lshl_b32 s49, s47, 6")
    g("s_add_u32 s48, s48, s49")
    for jj in range(1, 8):
        g(f"s_add_u32 s{48+jj}, s48, {jj*1024}")
    g("v_and_b32 v20, 15, v1")
    g("v_lshlrev_b32 v20, 2, v20")
    g("v_lshrrev_b32 v21, 4, v1")
    g("v_lshlrev_b32 v21, 13, v21")
    g("v_add_u32 v20, v20, v21")
    g("s_lshr_b32 s56, s46, 1")
    g("s_lshl_b32 s56, s56, 6")
    g("s_lshl_b32 s57, s47, 2")
    g("s_add_u32 s56, s56, s57")
    g("s_and_b32 s57, s46, 1")
    g("s_add_u32 s56, s56, s57")
    g("s_lshl_b32 s56, s56, 10")
    g(f"s_add_u32 s56, s56, {WOF}")
    g("s_add_u32 s57, s56, 2048")
    g(f"{LGO}:")
    for jj in range(8):
        g(f"buffer_load_dword v{24+jj}, v20, s[32:35], s{48+jj} offen")
    g("v_lshrrev_b32 v2, 3, v1")
    g("v_and_b32 v3, 7, v1")
    g("v_and_b32 v4, 1, v2")
    g("v_lshlrev_b32 v5, 10, v2")
    g("v_lshl_add_u32 v5, v3, 4, v5")
    g("v_add_u32 v5, s43, v5")
    g("v_lshlrev_b32 v4, 7, v4")
    g("v_add_u32 v6, v5, v4")
    g("v_xor_b32 v4, 128, v4")
    g("v_add_u32 v7, v5, v4")
    g("v_mov_b32 v8, 0x3f803f80")
    for r in range(72, 80): g(f"v_mov_b32 v{r}, 0")
    g("s_waitcnt vmcnt(18)")
    for i in range(8):
        a = 6 if i % 2 == 0 else 7
        g(f"ds_read_b128 v[{40+4*i}:{43+4*i}], v{a} offset:{(i & ~1)*128}")
    for i in range(8):
        g(f"s_waitcnt lgkmcnt({7-i})")
        for d in range(4):
            r = 40 + 4*i + d
            g(f"v_dot2c_f32_bf16 v{72+d}, v{r}, v8")
            g(f"v_dot2c_f32_bf16 v{76+d}, v{r}, v{r}")
    g("v_add_f32 v72, v72, v73"); g("v_add_f32 v74, v74, v75")
    g("v_add_f32 v76, v76, v77"); g("v_add_f32 v78, v78, v79")
    g("v_add_f32 v72, v72, v74"); g("v_add_f32 v76, v76, v78")
    for m in ("quad_perm:[1,0,3,2]", "quad_perm:[2,3,0,1]", "row_half_mirror"):
        g(f"v_add_f32_dpp v72, v72, v72 {m} row_mask:0xf bank_mask:0xf")
        g(f"v_add_f32_dpp v76, v76, v76 {m} row_mask:0xf bank_mask:0xf")
    g(f"v_mul_f32 v72, {f32(1/512)}, v72")
    g(f"v_mul_f32 v76, {f32(1/512)}, v76")
    g("v_fma_f32 v76, -v72, v72, v76")
    g("v_max_f32 v76, 0, v76")
    g(f"v_add_f32 v76, {f32(1e-5)}, v76")
    g("v_rsq_f32 v76, v76")
    g("v_mul_f32 v77, v72, v76")
    g("v_sub_f32 v77, 0, v77")
    g("v_lshlrev_b32 v5, 3, v2")
    g("s_lshl_b32 s45, s3, 6")
    g(f"s_add_u32 s45, s45, {ST_L}")
    g("v_add_u32 v5, s45, v5")
    g("ds_write_b64 v5, v[76:77]")
    g("s_waitcnt vmcnt(8) lgkmcnt(0)")
    g("s_barrier")
    g("s_waitcnt vmcnt(0)")
    g("s_mov_b32 s58, 0x05040100")
    g("s_mov_b32 s59, 0x07060302")
    for d in range(4):
        g(f"v_perm_b32 v{32+d}, v{25+2*d}, v{24+2*d}, s58")
        g(f"v_perm_b32 v{36+d}, v{25+2*d}, v{24+2*d}, s59")
    g("buffer_store_dwordx4 v[32:35], v19, s[36:39], s56 offen")
    g("buffer_store_dwordx4 v[36:39], v19, s[36:39], s57 offen")
    g("s_cmp_ge_u32 s3, 4")
    g("s_cbranch_scc1 K1_AUX")
    g("v_and_b32 v2, 31, v1")
    g("v_lshrrev_b32 v3, 5, v1")
    g("v_and_b32 v4, 15, v2")
    g("v_xor_b32 v4, v4, v3")
    g("v_lshlrev_b32 v4, 4, v4")
    g("s_lshr_b32 s45, s3, 1")
    g("s_lshl_b32 s46, s45, 15")
    g("v_lshl_add_u32 v4, v2, 10, v4")
    g("v_add_u32 v40, s46, v4")
    for sp in range(1, 8):
        g(f"v_xor_b32 v{40+sp}, {sp<<5}, v40")
    g("v_lshrrev_b32 v5, 5, v1")
    g("v_lshlrev_b32 v5, 9, v5")
    g("v_bfe_u32 v6, v1, 2, 2")
    g("v_lshl_add_u32 v5, v6, 6, v5")
    g("v_bfe_u32 v6, v1, 4, 1")
    g("v_lshl_add_u32 v5, v6, 5, v5")
    g("v_and_b32 v6, 3, v1")
    g("v_lshl_add_u32 v5, v6, 3, v5")
    g("s_lshl_b32 s46, s42, 15")
    g(f"s_add_u32 s46, s46, {WQ_L}")
    g("v_add_u32 v48, s46, v5")
    for r in range(16): g(f"v_mov_b32 v{100+r}, 0")
    def qload(s):
        b = 52 + 8*(s % 4)
        g(f"ds_read_b64_tr_b16 v[{b}:{b+1}], v48 offset:{s*1024}")
        g(f"ds_read_b64_tr_b16 v[{b+2}:{b+3}], v48 offset:{s*1024+256}")
        g(f"ds_read_b128 v[{b+4}:{b+7}], v{40+(s&7)} offset:{(s>>3)*256}")
    for s in range(4): qload(s)
    for s in range(32):
        b = 52 + 8*(s % 4)
        g(f"s_waitcnt lgkmcnt({min(9, 3*(31-s))})")
        g(f"v_mfma_f32_32x32x16_bf16 v[100:115], v[{b}:{b+3}], v[{b+4}:{b+7}], v[100:115]")
        if s + 4 < 32: qload(s + 4)
    g("s_barrier")
    g("s_lshl_b32 s46, s45, 8")
    g(f"s_add_u32 s46, s46, {ST_L}")
    g("v_lshlrev_b32 v5, 3, v2")
    g("v_add_u32 v5, s46, v5")
    g("ds_read_b64 v[52:53], v5")
    g("s_lshl_b32 s46, s42, 7")
    g(f"s_add_u32 s46, s46, {CS_L}")
    g("v_lshlrev_b32 v5, 4, v3")
    g("v_add_u32 v5, s46, v5")
    for gp in range(4):
        g(f"ds_read_b128 v[{56+4*gp}:{59+4*gp}], v5 offset:{gp*32}")
    g(f"s_mov_b32 s46, {f32(0.25*LOG2E)}")
    g("s_waitcnt lgkmcnt(0)")
    g("v_mul_f32 v52, s46, v52")
    g("v_mul_f32 v53, s46, v53")
    for r in range(16):
        g(f"v_mul_f32 v{56+r}, v53, v{56+r}")
    for r in range(16):
        g(f"v_fma_f32 v{100+r}, v52, v{100+r}, v{56+r}")
    g("v_mul_f32 v54, v100, v100")
    g("v_mul_f32 v55, v108, v108")
    for r in range(1, 8):
        g(f"v_fmac_f32 v54, v{100+r}, v{100+r}")
        g(f"v_fmac_f32 v55, v{108+r}, v{108+r}")
    for r in range(8):
        g(f"v_cvt_pk_bf16_f32 v{80+r}, v{100+2*r}, v{101+2*r}")
    g("v_lshrrev_b32 v5, 3, v2")
    g("v_lshlrev_b32 v5, 13, v5")
    g("v_and_b32 v6, 7, v2")
    g("v_lshl_add_u32 v5, v6, 4, v5")
    g("v_lshl_add_u32 v5, v3, 9, v5")
    g("s_lshl_b32 s46, s40, 16")
    g("s_lshl_b32 s47, s45, 15")
    g("s_add_u32 s46, s46, s47")
    g("s_lshl_b32 s47, s41, 10")
    g("s_add_u32 s46, s46, s47")
    g("s_lshl_b32 s47, s42, 8")
    g("s_add_u32 s46, s46, s47")
    g(f"s_add_u32 s46, s46, {QF}")
    g("buffer_store_dwordx4 v[80:83], v5, s[36:39], s46 offen")
    g("buffer_store_dwordx4 v[84:87], v5, s[36:39], s46 offen offset:128")
    g("v_mov_b32 v56, v54"); g("v_mov_b32 v57, v55")
    g("v_permlane32_swap_b32 v54, v56")
    g("v_permlane32_swap_b32 v55, v57")
    g("v_add_f32 v54, v54, v56"); g("v_add_f32 v55, v55, v57")
    g("v_max_f32 v54, v54, v55")
    wave_max16x4(g, 54, 56)
    g("s_lshl_b32 s46, s2, 4")
    g("s_lshl_b32 s47, s3, 2")
    g("s_add_u32 s46, s46, s47")
    g(f"s_add_u32 s46, s46, {QMAX}")
    g("v_mov_b32 v5, 0")
    g("v_cmp_eq_u32 vcc, 0, v1")
    g("s_and_saveexec_b64 s[60:61], vcc")
    g("buffer_store_dword v54, v5, s[36:39], s46 offen")
    g("s_endpgm")
    g("K1_AUX:")
    g("s_sub_u32 s45, s3, 4")
    g("v_lshrrev_b32 v5, 4, v1")
    g("v_lshlrev_b32 v5, 9, v5")
    g("v_bfe_u32 v6, v1, 2, 2")
    g("v_lshl_add_u32 v5, v6, 6, v5")
    g("v_and_b32 v6, 3, v1")
    g("v_lshl_add_u32 v5, v6, 3, v5")
    g("s_lshr_b32 s46, s45, 1")
    g("s_lshl_b32 s46, s46, 15")
    g("s_and_b32 s47, s45, 1")
    g("s_lshl_b32 s47, s47, 5")
    g("s_add_u32 s46, s46, s47")
    g(f"s_add_u32 s46, s46, {WQ_L}")
    g("v_add_u32 v48, s46, v5")
    for r in range(4):
        g(f"v_mov_b32 v{44+r}, 0x3f803f80")
        g(f"v_mov_b32 v{100+r}, 0")
    def cload(s):
        b = 52 + 4*(s % 6)
        g(f"ds_read_b64_tr_b16 v[{b}:{b+1}], v48 offset:{s*2048}")
        g(f"ds_read_b64_tr_b16 v[{b+2}:{b+3}], v48 offset:{s*2048+256}")
    for s in range(6): cload(s)
    for s in range(16):
        b = 52 + 4*(s % 6)
        g(f"s_waitcnt lgkmcnt({min(10, 2*(15-s))})")
        g(f"v_mfma_f32_16x16x32_bf16 v[100:103], v[{b}:{b+3}], v[44:47], v[100:103]")
        if s + 6 < 16: cload(s + 6)
    g("v_lshrrev_b32 v5, 4, v1")
    g("v_lshlrev_b32 v5, 4, v5")
    g("s_lshl_b32 s46, s45, 6")
    g(f"s_add_u32 s46, s46, {CS_L}")
    g("v_add_u32 v5, s46, v5")
    g("ds_write_b128 v5, v[100:103]")
    g("s_cmp_lg_u32 s3, 7")
    g("s_cbranch_scc1 K1_AUXEND")
    g("v_and_b32 v2, 15, v1")
    g("v_lshrrev_b32 v3, 4, v1")
    g("s_lshr_b32 s46, s41, 1")
    g("s_lshl_b32 s47, s46, 14")
    g("v_xor_b32 v4, v2, v3")
    g("v_lshlrev_b32 v4, 4, v4")
    g("v_lshl_add_u32 v4, v2, 10, v4")
    g("v_add_u32 v40, s47, v4")
    for sp in range(1, 4):
        g(f"v_xor_b32 v{40+sp}, {sp<<6}, v40")
    g("v_lshlrev_b32 v5, 8, v3")
    g("v_bfe_u32 v6, v1, 2, 2")
    g("v_lshl_add_u32 v5, v6, 5, v5")
    g("v_and_b32 v6, 3, v1")
    g("v_lshl_add_u32 v5, v6, 3, v5")
    g(f"v_add_u32 v48, {WKV_L}, v5")
    for r in range(8): g(f"v_mov_b32 v{100+r}, 0")
    def kload(s):
        b = 52 + 8*(s % 4)
        g(f"ds_read_b64_tr_b16 v[{b}:{b+1}], v48 offset:{s*1024}")
        g(f"ds_read_b64_tr_b16 v[{b+2}:{b+3}], v48 offset:{s*1024+128}")
        g(f"ds_read_b128 v[{b+4}:{b+7}], v{40+(s&3)} offset:{(s>>2)*256}")
    g("s_waitcnt lgkmcnt(0)")
    for s in range(4): kload(s)
    for s in range(16):
        b = 52 + 8*(s % 4)
        g(f"s_waitcnt lgkmcnt({min(9, 3*(15-s))})")
        g(f"v_mfma_f32_16x16x32_bf16 v[100:103], v[{b}:{b+3}], v[{b+4}:{b+7}], v[100:103]")
        g(f"v_mfma_f32_16x16x32_bf16 v[104:107], v[{b}:{b+3}], v[44:47], v[104:107]")
        if s + 4 < 16: kload(s + 4)
    g("s_barrier")
    g("s_lshl_b32 s47, s46, 7")
    g(f"s_add_u32 s47, s47, {ST_L}")
    g("v_lshlrev_b32 v5, 3, v2")
    g("v_add_u32 v5, s47, v5")
    g("ds_read_b64 v[52:53], v5")
    g("s_waitcnt lgkmcnt(0)")
    for r in range(4):
        g(f"v_mul_f32 v{104+r}, v53, v{104+r}")
    for r in range(4):
        g(f"v_fma_f32 v{100+r}, v52, v{100+r}, v{104+r}")
    g("v_cvt_pk_bf16_f32 v80, v100, v101")
    g("v_cvt_pk_bf16_f32 v81, v102, v103")
    g("s_lshl_b32 s47, s40, 1")
    g("s_lshr_b32 s48, s41, 2")
    g("s_add_u32 s47, s47, s48")
    g("s_lshl_b32 s47, s47, 10")
    g("s_and_b32 s48, s46, 1")
    g("s_and_b32 s49, s41, 1")
    g("s_cmp_eq_u32 s49, 1")
    g("s_cbranch_scc1 K1_V")
    g("v_and_b32 v5, 1, v3")
    g("v_lshlrev_b32 v5, 9, v5")
    g("v_lshl_add_u32 v5, v2, 4, v5")
    g("v_lshrrev_b32 v6, 1, v3")
    g("v_lshl_add_u32 v5, v6, 3, v5")
    g("s_lshl_b32 s48, s48, 8")
    g("s_add_u32 s47, s47, s48")
    g(f"s_add_u32 s47, s47, {KF}")
    g("buffer_store_dwordx2 v[80:81], v5, s[36:39], s47 offen")
    g("v_mul_f32 v54, v100, v100")
    for r in range(1, 4): g(f"v_fmac_f32 v54, v{100+r}, v{100+r}")
    g("v_mov_b32 v56, v54")
    g("v_permlane16_swap_b32 v54, v56")
    g("v_add_f32 v54, v54, v56")
    g("v_mov_b32 v56, v54")
    g("v_permlane32_swap_b32 v54, v56")
    g("v_add_f32 v54, v54, v56")
    wave_max16x4(g, 54, 56)
    g("s_lshl_b32 s47, s40, 2")
    g("s_add_u32 s47, s47, s46")
    g("s_lshl_b32 s47, s47, 2")
    g(f"s_add_u32 s47, s47, {KMAX}")
    g("v_mov_b32 v5, 0")
    g("v_cmp_eq_u32 vcc, 0, v1")
    g("s_and_saveexec_b64 s[60:61], vcc")
    g("buffer_store_dword v54, v5, s[36:39], s47 offen")
    g("s_endpgm")
    g("K1_V:")
    g("v_bfe_u32 v5, v2, 2, 1")
    g("v_lshlrev_b32 v5, 8, v5")
    g("v_lshl_add_u32 v5, v3, 6, v5")
    g("v_lshrrev_b32 v6, 3, v2")
    g("v_lshl_add_u32 v5, v6, 3, v5")
    g("v_and_b32 v6, 3, v2")
    g("v_lshl_add_u32 v5, v6, 1, v5")
    g("s_lshl_b32 s48, s48, 9")
    g("s_add_u32 s47, s47, s48")
    g(f"s_add_u32 s47, s47, {VF}")
    g("buffer_store_short v80, v5, s[36:39], s47 offen")
    g("buffer_store_short_d16_hi v80, v5, s[36:39], s47 offen offset:16")
    g("buffer_store_short v81, v5, s[36:39], s47 offen offset:32")
    g("buffer_store_short_d16_hi v81, v5, s[36:39], s47 offen offset:48")
    g("s_endpgm")
    g("K1_AUXEND:")
    g("s_waitcnt lgkmcnt(0)")
    g("s_barrier")
    g(f"{END}:")
    g("s_endpgm")
    return g.lines, LDS
```

```python
from common import *

KR = 32; VR = 64; SA = 128; SB = 144; OR_ = 160; NM = 176; QR = 192; WO = 200; HA = 232
PART_L = 0; PART_SZ = 18432; QL_L = 36864; BF_L = 45056; MX_L = 47104; LNS_L = 48128; K2A_LDS = 48640

def attn_tile(g, kt, first_o1_zero, pre=None, mid=None, extra=None, knext=None, wait=None):
    A = SA if kt % 2 == 0 else SB
    B = SB if kt % 2 == 0 else SA
    ex = list(extra or [])
    def X(n=1):
        for _ in range(n):
            if ex: ex.pop(0)()
    if pre: pre()
    g(f"v_exp_f32 v{A+2}, v{A+2}"); g(f"v_exp_f32 v{A+3}, v{A+3}")
    kn = (kt + 1) % 8
    if knext: knext()
    if wait is not None: g(f"s_waitcnt vmcnt({wait})")
    g(f"v_mfma_f32_32x32x16_bf16 v[{B}:{B+15}], v[{KR+4*kn}:{KR+4*kn+3}], v[{QR}:{QR+3}], v[{NM}:{NM+15}]")
    for r in range(4, 8): g(f"v_exp_f32 v{A+r}, v{A+r}")
    X()
    for c in range(4): g(f"v_cvt_pk_bf16_f32 v{A+c}, v{A+2*c}, v{A+2*c+1}")
    g(f"v_exp_f32 v{A+8}, v{A+8}"); g(f"v_exp_f32 v{A+9}, v{A+9}")
    if mid: mid()
    cz = "0" if first_o1_zero else f"v[{OR_}:{OR_+15}]"
    g(f"v_mfma_f32_32x32x16_bf16 v[{OR_}:{OR_+15}], v[{VR+8*kt}:{VR+8*kt+3}], v[{A}:{A+3}], {cz}")
    for r in range(10, 13): g(f"v_exp_f32 v{A+r}, v{A+r}")
    X()
    for r in range(13, 16): g(f"v_exp_f32 v{A+r}, v{A+r}")
    X()
    for c in range(4, 8): g(f"v_cvt_pk_bf16_f32 v{A+c}, v{A+2*c}, v{A+2*c+1}")
    g(f"v_exp_f32 v{B}, v{B}"); g(f"v_exp_f32 v{B+1}, v{B+1}")
    g(f"v_mfma_f32_32x32x16_bf16 v[{OR_}:{OR_+15}], v[{VR+8*kt+4}:{VR+8*kt+7}], v[{A+4}:{A+7}], v[{OR_}:{OR_+15}]")
    X(8)

def gen_k2a(label, standalone=True, stamps=False):
    g = Gen()
    ST = Stamps(g, stamps)
    END = "K2A_END"
    g(f"s_cmp_ge_u32 s2, 256")
    g(f"s_cbranch_scc1 {END}")
    ST()
    g("s_load_dwordx2 s[4:5], s[0:1], 0")
    g("s_load_dwordx2 s[18:19], s[0:1], 88")
    ids(g)
    g("v_lshlrev_b32 v3, 4, v1")
    g("v_mov_b32 v4, 0")
    g("v_lshlrev_b32 v2, 2, v0")
    g(f"v_mov_b32 v8, 0xff800000")
    g("v_cmp_gt_u32 vcc, 256, v0")
    g("s_and_saveexec_b64 s[60:61], vcc")
    g(f"ds_write_b32 v2, v8 offset:{MX_L}")
    g("v_cmp_gt_u32 vcc, 16, v0")
    g("s_and_b64 exec, exec, vcc")
    g(f"ds_write_b32 v2, v4 offset:{LNS_L}")
    g("s_mov_b64 exec, s[60:61]")
    for r in range(64): g(f"v_mov_b32 v{VR+r}, 0x3f803f80")
    for r in range(16): g(f"v_mov_b32 v{NM+r}, 0")
    g("s_waitcnt lgkmcnt(0)")
    ST()
    srd(g, 20, 4, 0x200000)
    srd(g, 36, 18, WS_SIZE)
    g("s_lshl_b32 s43, s40, 3")
    g("s_add_u32 s43, s43, s41")
    g("s_lshl_b32 s44, s43, 13")
    g("s_lshl_b32 s45, s3, 10")
    g("s_add_u32 s44, s44, s45")
    g(f"s_add_u32 s44, s44, {QF}")
    g(f"s_add_u32 s45, s45, {QL_L}")
    g("s_mov_b32 m0, s45")
    g("s_nop 0")
    g("buffer_load_dwordx4 v3, s[36:39], s44 offen lds")
    g("v_lshlrev_b32 v4, 2, v1")
    g(f"s_mov_b32 s46, {KMAX}")
    g("buffer_load_dword v10, v4, s[36:39], s46 offen")
    g("buffer_load_dword v11, v4, s[36:39], s46 offen offset:256")
    g("v_bfe_u32 v5, v1, 2, 3")
    g("v_lshlrev_b32 v5, 7, v5")
    g("v_and_b32 v6, 3, v1")
    g("v_lshl_add_u32 v5, v6, 2, v5")
    g("s_and_b32 s46, s2, 0xc7")
    g("s_lshl_b32 s46, s46, 4")
    g(f"s_add_u32 s46, s46, {QMAX}")
    g("buffer_load_dword v12, v5, s[36:39], s46 offen")
    g("v_and_b32 v5, 7, v1")
    g("v_lshlrev_b32 v5, 10, v5")
    g("v_lshrrev_b32 v6, 4, v1")
    g("v_lshl_add_u32 v5, v6, 4, v5")
    g("s_lshl_b32 s46, s43, 13")
    g("s_lshl_b32 s47, s3, 7")
    g("s_add_u32 s46, s46, s47")
    g("buffer_load_dwordx4 v[16:19], v5, s[20:23], s46 offen")
    g("buffer_load_dwordx4 v[20:23], v5, s[20:23], s46 offen offset:64")
    g("v_and_b32 v6, 15, v1")
    g("v_lshlrev_b32 v6, 4, v6")
    g("v_lshrrev_b32 v7, 5, v1")
    g("v_lshl_add_u32 v6, v7, 8, v6")
    g("s_lshl_b32 s46, s3, 13")
    g(f"s_add_u32 s47, s46, {VF}")
    if KF: g(f"s_add_u32 s46, s46, {KF}")
    g("s_mov_b32 s62, 0x0000ffff")
    g("s_mov_b32 s63, 0x0000ffff")
    for kt in range(8):
        g(f"buffer_load_dwordx4 v[{KR+4*kt}:{KR+4*kt+3}], v3, s[36:39], s46 offen" + (f" offset:{(kt&3)*1024}" if kt & 3 else ""))
        g("s_mov_b64 exec, s[62:63]")
        o = (kt & 3) * 1024
        g(f"buffer_load_dwordx4 v[{VR+8*kt}:{VR+8*kt+3}], v6, s[36:39], s47 offen offset:{o}")
        g(f"buffer_load_dwordx4 v[{VR+8*kt+4}:{VR+8*kt+7}], v6, s[36:39], s47 offen offset:{o+512}")
        g("s_mov_b64 exec, -1")
        if kt == 3:
            g("s_add_u32 s46, s46, 4096"); g("s_add_u32 s47, s47, 4096")
    g("s_lshl_b32 s50, s3, 13")
    g(f"s_add_u32 s50, s50, {WOF}")
    def wo_loads(dst):
        g("s_add_u32 s51, s50, 4096")
        for i in range(8):
            so = "s50" if i < 4 else "s51"
            g(f"buffer_load_dwordx4 v[{dst+4*i}:{dst+4*i+3}], v3, s[36:39], {so} offen offset:{(i&3)*1024}")
        g("s_add_u32 s50, s50, 65536")
    wo_loads(WO)
    g("v_lshrrev_b32 v5, 3, v1")
    g("v_add_u32 v5, s3, v5")
    g("v_and_b32 v5, 7, v5")
    g("v_lshlrev_b32 v24, 5, v1")
    g("v_lshl_add_u32 v24, v5, 2, v24")
    g("v_lshlrev_b32 v26, 5, v1")
    g("s_lshl_b32 s46, s3, 11")
    g("v_add_u32 v25, s46, v26")
    g(f"v_add_u32 v26, {8*2048}, v26")
    g(f"s_mov_b32 s54, {PART_SZ}")
    g(f"s_mov_b32 s55, {PART_SZ}")
    g("v_bfe_u32 v5, v1, 3, 2")
    g("v_lshlrev_b32 v27, 8, v5")
    g("v_and_b32 v5, 7, v1")
    g("v_lshl_add_u32 v27, v5, 4, v27")
    g("v_lshrrev_b32 v5, 5, v1")
    g("v_lshl_add_u32 v27, v5, 3, v27")
    g("s_lshr_b32 s46, s3, 2")
    g("s_lshl_b32 s46, s46, 7")
    g("s_and_b32 s47, s3, 3")
    g("s_lshl_b32 s47, s47, 1")
    g("s_add_u32 s46, s46, s47")
    g(f"s_add_u32 s46, s46, {BF_L}")
    g("v_add_u32 v27, s46, v27")
    g("v_lshrrev_b32 v5, 4, v1")
    g("v_lshlrev_b32 v28, 7, v5")
    g("v_and_b32 v5, 7, v1")
    g("v_lshl_add_u32 v28, v5, 4, v28")
    g(f"v_add_u32 v28, {BF_L}, v28")
    g(f"v_add_u32 v29, {QL_L}, v3")
    g("v_and_b32 v5, 31, v1")
    g("v_lshlrev_b32 v30, 2, v5")
    g(f"v_add_u32 v30, {MX_L}, v30")
    ST()
    g("s_waitcnt vmcnt(34)")
    ST()
    g("v_max_f32 v10, v10, v11")
    g("v_cmp_gt_u32 vcc, 32, v1")
    g("v_cndmask_b32 v12, 0, v12, vcc")
    wave_max16x4(g, 10, 13)
    wave_max16x4(g, 12, 13)
    g("v_mul_f32 v10, v10, v12")
    g(f"v_mov_b32 v11, {f32(3900.0)}")
    g("v_cmp_le_f32 vcc, v10, v11")
    g("s_mov_b32 s52, 0")
    g("s_cmp_eq_u64 vcc, 0")
    g("s_cselect_b32 s52, 1, 0")
    g("s_waitcnt vmcnt(32)")
    ST()
    for blk in range(2):
        for rr in range(4):
            g(f"v_lshlrev_b32 v{HA+8*blk+rr}, 16, v{16+4*blk+rr}")
            g(f"v_and_b32 v{HA+8*blk+4+rr}, 0xffff0000, v{16+4*blk+rr}")
    g("s_waitcnt lgkmcnt(0)")
    g("s_barrier")
    ST()
    g(f"ds_read_b128 v[{QR}:{QR+3}], v29")
    g("s_cmp_eq_u32 s52, 0")
    g("s_cbranch_scc1 K2A_FAST")
    g("s_waitcnt vmcnt(8)")
    g("s_mov_b32 s53, 0")
    g("v_mov_b32 v8, v29"); g("v_mov_b32 v9, v30")
    g("K2A_PRE:")
    g(f"ds_read_b128 v[{QR}:{QR+3}], v8")
    g("s_waitcnt lgkmcnt(0)")
    g("v_mov_b32 v10, 0xff800000")
    for kt in range(8):
        g(f"v_mfma_f32_32x32x16_bf16 v[{SA}:{SA+15}], v[{KR+4*kt}:{KR+4*kt+3}], v[{QR}:{QR+3}], 0")
        for r in range(0, 16, 2):
            g(f"v_max3_f32 v10, v10, v{SA+r}, v{SA+r+1}")
    g("v_mov_b32 v11, v10")
    g("v_permlane32_swap_b32 v10, v11")
    g("v_max_f32 v10, v10, v11")
    g("ds_max_f32 v9, v10")
    g("v_add_u32 v8, 1024, v8"); g("v_add_u32 v9, 128, v9")
    g("s_add_u32 s53, s53, 1")
    g("s_cmp_lt_u32 s53, 8")
    g("s_cbranch_scc1 K2A_PRE")
    g("s_waitcnt lgkmcnt(0)")
    g("s_barrier")
    g(f"ds_read_b128 v[{QR}:{QR+3}], v29")
    g("ds_read_b32 v10, v30")
    g("s_waitcnt lgkmcnt(0)")
    for r in range(16): g(f"v_sub_f32 v{NM+r}, 0, v10")
    g("K2A_FAST:")
    g("s_waitcnt vmcnt(31) lgkmcnt(0)")
    g(f"v_mfma_f32_32x32x16_bf16 v[{SA}:{SA+15}], v[{KR}:{KR+3}], v[{QR}:{QR+3}], v[{NM}:{NM+15}]")
    g(f"v_exp_f32 v{SA}, v{SA}"); g(f"v_exp_f32 v{SA+1}, v{SA+1}")
    g("s_mov_b32 s53, 0")
    ST()
    g("K2A_LOOP:")
    def part_write():
        for r in range(9):
            g(f"ds_write_b32 v24, v{OR_+r} offset:{r*2048}")
        g("v_add_u32 v24, s54, v24")
        g("s_sub_u32 s54, 0, s54")
    def adds():
        L = g.lab("SKA")
        g("s_cmp_eq_u32 s53, 0"); g(f"s_cbranch_scc1 {L}")
        part_write()
        g(f"{L}:")
    def stB_issue():
        g("ds_read_b128 v[4:7], v25"); g("ds_read_b128 v[8:11], v25 offset:16")
        g("ds_read_b128 v[12:15], v26"); g("ds_read_b128 v[16:19], v26 offset:16")
        g("v_add_u32 v25, s55, v25"); g("v_add_u32 v26, s55, v26")
        g("s_sub_u32 s55, 0, s55")
    def stB_calc():
        for b in (4, 12):
            g(f"v_add_f32 v{b}, v{b}, v{b+1}"); g(f"v_add_f32 v{b+2}, v{b+2}, v{b+3}")
            g(f"v_add_f32 v{b+4}, v{b+4}, v{b+5}"); g(f"v_add_f32 v{b+6}, v{b+6}, v{b+7}")
            g(f"v_add_f32 v{b}, v{b}, v{b+2}"); g(f"v_add_f32 v{b+4}, v{b+4}, v{b+6}")
            g(f"v_add_f32 v{b}, v{b}, v{b+4}")
        g("v_rcp_f32 v12, v12")
        g("v_mul_f32 v4, v4, v12")
        g("v_cvt_pk_bf16_f32 v4, v4, v4")
        g("ds_write_b16 v27, v4")
        g("v_xor_b32 v27, 1024, v27")
    def stB_read():
        g("s_waitcnt lgkmcnt(0)")
        g("s_barrier")
        L = g.lab("SKB")
        g("s_cmp_eq_u32 s53, 0"); g(f"s_cbranch_scc1 {L}")
        stB_issue()
        g(f"{L}:")
    def stB_fin(g_read_c=True):
        L = g.lab("SKB2")
        g("s_cmp_eq_u32 s53, 0"); g(f"s_cbranch_scc1 {L}")
        g("s_waitcnt lgkmcnt(0)")
        stB_calc()
        g("s_cmp_eq_u32 s53, 1"); g(f"s_cbranch_scc1 {L}")
        g("ds_read_b128 v[12:15], v28"); g("ds_read_b128 v[16:19], v28 offset:512")
        g("v_xor_b32 v28, 1024, v28")
        g(f"{L}:")
    def stC(src, bf=(12, 16)):
        for tt in range(4):
            for s in range(2):
                g(f"v_mfma_f32_16x16x32_bf16 v[{HA+4*tt}:{HA+4*tt+3}], v[{src+8*tt+4*s}:{src+8*tt+4*s+3}], v[{bf[s]}:{bf[s]+3}], v[{HA+4*tt}:{HA+4*tt+3}]")
    def stC_loop():
        L = g.lab("SKC")
        g("s_cmp_lt_u32 s53, 2"); g(f"s_cbranch_scc1 {L}")
        g("s_waitcnt vmcnt(0) lgkmcnt(0)")
        for s in range(2):
            for tt in range(4):
                bf = (12, 16)
                g(f"v_mfma_f32_16x16x32_bf16 v[{HA+4*tt}:{HA+4*tt+3}], v[{WO+8*tt+4*s}:{WO+8*tt+4*s+3}], v[{bf[s]}:{bf[s]+3}], v[{HA+4*tt}:{HA+4*tt+3}]")
        wo_loads(WO)
        g(f"{L}:")
    def qnext():
        g("s_waitcnt lgkmcnt(0)")
        L = g.lab("SKN")
        g("s_cmp_eq_u32 s52, 0"); g(f"s_cbranch_scc1 {L}")
        g("v_add_u32 v30, 128, v30")
        g("ds_read_b32 v10, v30")
        g("s_waitcnt lgkmcnt(0)")
        for r in range(16): g(f"v_sub_f32 v{NM+r}, 0, v10")
        g(f"{L}:")
    def qread():
        g("v_add_u32 v29, 1024, v29")
        g(f"ds_read_b128 v[{QR}:{QR+3}], v29")
    for kt in range(8):
        wait = (24 - (3*(kt+1) + 1) + 8) if kt < 7 else 8
        pre = None; mid = None; knext = None
        if kt == 0: mid = adds
        if kt == 2: pre = stB_read
        if kt == 3: pre = stB_fin
        if kt == 5: pre = stC_loop
        if kt == 7: knext = qnext; pre = qread_dummy = None
        extra = None
        attn_tile(g, kt, first_o1_zero=(kt == 0), pre=pre, mid=mid, knext=knext, wait=wait,
                  extra=[lambda: None, qread] if kt == 6 else None)
    g("s_add_u32 s53, s53, 1")
    g("s_cmp_lt_u32 s53, 8")
    g("s_cbranch_scc1 K2A_LOOP")
    ST()
    wo_loads(KR)
    part_write()
    g("s_waitcnt lgkmcnt(0)")
    g("s_barrier")
    stB_issue()
    g("ds_read_b128 v[40+24:43+24], v28".replace("40+24", "64").replace("43+24", "67")); g("ds_read_b128 v[68:71], v28 offset:512")
    g("v_xor_b32 v28, 1024, v28")
    g("s_waitcnt lgkmcnt(2)")
    stB_calc()
    g("s_waitcnt vmcnt(8) lgkmcnt(0)")
    for s in range(2):
        for tt in range(4):
            g(f"v_mfma_f32_16x16x32_bf16 v[{HA+4*tt}:{HA+4*tt+3}], v[{WO+8*tt+4*s}:{WO+8*tt+4*s+3}], v[{64+4*s}:{67+4*s}], v[{HA+4*tt}:{HA+4*tt+3}]")
    g("s_barrier")
    g("ds_read_b128 v[12:15], v28"); g("ds_read_b128 v[16:19], v28 offset:512")
    g("s_waitcnt vmcnt(0) lgkmcnt(0)")
    for s in range(2):
        for tt in range(4):
            g(f"v_mfma_f32_16x16x32_bf16 v[{HA+4*tt}:{HA+4*tt+3}], v[{KR+8*tt+4*s}:{KR+8*tt+4*s+3}], v[{12+4*s}:{15+4*s}], v[{HA+4*tt}:{HA+4*tt+3}]")
    ST()
    g(f"v_add_f32 v10, v{HA}, v{HA+1}")
    g(f"v_mul_f32 v11, v{HA}, v{HA}")
    g(f"v_fmac_f32 v11, v{HA+1}, v{HA+1}")
    for r in range(2, 16):
        g(f"v_add_f32 v10, v10, v{HA+r}")
        g(f"v_fmac_f32 v11, v{HA+r}, v{HA+r}")
    for sw in ("v_permlane16_swap_b32", "v_permlane32_swap_b32"):
        g("v_mov_b32 v12, v10"); g("v_mov_b32 v13, v11")
        g(f"{sw} v10, v12"); g(f"{sw} v11, v13")
        g("v_add_f32 v10, v10, v12"); g("v_add_f32 v11, v11, v13")
    g("v_and_b32 v5, 7, v1")
    g("v_lshlrev_b32 v5, 3, v5")
    g(f"v_add_u32 v5, {LNS_L}, v5")
    g("s_mov_b64 exec, 0xff")
    g("ds_add_f32 v5, v10"); g("ds_add_f32 v5, v11 offset:4")
    g("s_mov_b64 exec, -1")
    for blk in range(2):
        for rr in range(4):
            g(f"v_cvt_pk_bf16_f32 v{40+4*blk+rr}, v{HA+8*blk+rr}, v{HA+8*blk+4+rr}")
    g("v_and_b32 v6, 7, v1")
    g("v_lshlrev_b32 v6, 10, v6")
    g("v_lshrrev_b32 v7, 4, v1")
    g("v_lshl_add_u32 v6, v7, 4, v6")
    g("s_lshl_b32 s46, s43, 13")
    g("s_lshl_b32 s47, s3, 7")
    g("s_add_u32 s46, s46, s47")
    g(f"s_add_u32 s46, s46, {HB}")
    g("s_mov_b32 s62, 0x00ff00ff"); g("s_mov_b32 s63, 0x00ff00ff")
    g("s_mov_b64 exec, s[62:63]")
    g("buffer_store_dwordx4 v[40:43], v6, s[36:39], s46 offen")
    g("buffer_store_dwordx4 v[44:47], v6, s[36:39], s46 offen offset:64")
    g("s_mov_b64 exec, -1")
    g("s_waitcnt lgkmcnt(0)")
    g("s_barrier")
    g("ds_read_b64 v[10:11], v5")
    g("s_waitcnt lgkmcnt(0)")
    g(f"v_mul_f32 v10, {f32(1/512)}, v10")
    g(f"v_mul_f32 v11, {f32(1/512)}, v11")
    g("v_fma_f32 v11, -v10, v10, v11")
    g("v_max_f32 v11, 0, v11")
    g(f"v_add_f32 v11, {f32(1e-5)}, v11")
    g("v_rsq_f32 v11, v11")
    g(f"v_mul_f32 v11, {f32(LOG2E)}, v11")
    g("v_mul_f32 v10, v10, v11")
    g("v_sub_f32 v10, 0, v10")
    for r in range(16):
        g(f"v_fma_f32 v{HA+r}, v{HA+r}, v11, v10")
    for blk in range(2):
        for rr in range(4):
            g(f"v_cvt_pk_bf16_f32 v{48+4*blk+rr}, v{HA+8*blk+rr}, v{HA+8*blk+4+rr}")
    g("v_and_b32 v6, 7, v1")
    g("v_lshlrev_b32 v6, 4, v6")
    g("v_and_b32 v8, 1, v7")
    g("v_lshl_add_u32 v6, v8, 9, v6")
    g("v_lshrrev_b32 v8, 1, v7")
    g("v_lshl_add_u32 v6, v8, 10, v6")
    g("s_lshl_b32 s46, s40, 1")
    g("s_lshr_b32 s47, s41, 2")
    g("s_add_u32 s46, s46, s47")
    g("s_lshl_b32 s46, s46, 15")
    g("s_lshl_b32 s47, s3, 12")
    g("s_add_u32 s46, s46, s47")
    g("s_and_b32 s47, s41, 3")
    g("s_lshl_b32 s47, s47, 7")
    g("s_add_u32 s46, s46, s47")
    g(f"s_add_u32 s46, s46, {HN}")
    g("s_mov_b64 exec, s[62:63]")
    g("buffer_store_dwordx4 v[48:51], v6, s[36:39], s46 offen")
    g("buffer_store_dwordx4 v[52:55], v6, s[36:39], s46 offen offset:2048")
    ST()
    ST.flush(kid=1)
    g(f"{END}:")
    g("s_endpgm")
    return g.lines, K2A_LDS
```

```python
from common import *

W = 64; AC0 = 192; AC1 = 208; BR = 224; BI = 240

def mish_ops(g, a, t0, t1):
    return [lambda: g(f"v_exp_f32 v{t0}, v{a}"),
            lambda: g(f"v_add_f32 v{t1}, 2.0, v{t0}"),
            lambda: g(f"v_fma_f32 v{t0}, v{t0}, v{t1}, 2.0"),
            lambda: g(f"v_rcp_f32 v{t0}, v{t0}"),
            lambda: g(f"v_fma_f32 v{t0}, v{t0}, s58, v2"),
            lambda: g(f"v_mul_f32 v{a}, v{a}, v{t0}")]

def mish_stream(g, acc, dst, T=8):
    ops = []
    for grp in range(4):
        per = [mish_ops(g, acc + 4*grp + i, T + 2*i, T + 2*i + 1) for i in range(4)]
        for k in range(6):
            for i in range(4): ops.append(per[i][k])
        for i in range(2):
            r = acc + 4*grp + 2*i
            ops.append(lambda r=r, d=dst + 2*grp + i: g(f"v_cvt_pk_bf16_f32 v{d}, v{r}, v{r+1}"))
    return ops

def gen_k2b(label, stamps=False):
    g = Gen(); ST = Stamps(g, stamps)
    END = "K2B_END"
    g(f"s_cmp_ge_u32 s2, 256")
    g(f"s_cbranch_scc1 {END}")
    ST()
    g("s_load_dwordx2 s[4:5], s[0:1], 56")
    g("s_load_dwordx2 s[18:19], s[0:1], 88")
    ids(g)
    g("v_lshlrev_b32 v3, 4, v1")
    g("s_waitcnt lgkmcnt(0)")
    srd(g, 20, 4, 1792*2)
    srd(g, 36, 18, WS_SIZE)
    g("s_lshl_b32 s43, s3, 13")
    g("s_lshl_b32 s44, s40, 16")
    g("s_add_u32 s44, s44, s43")
    g(f"s_add_u32 s44, s44, {HN}")
    g("s_mov_b32 m0, s43")
    g("s_nop 0")
    for i in range(4): g(f"buffer_load_dwordx4 v3, s[36:39], s44 offen offset:{i*1024} lds")
    g("s_add_u32 s45, s43, 4096"); g("s_mov_b32 m0, s45"); g("s_add_u32 s44, s44, 4096")
    for i in range(4): g(f"buffer_load_dwordx4 v3, s[36:39], s44 offen offset:{i*1024} lds")
    g("s_cmp_eq_u32 s3, 7")
    g("s_cbranch_scc1 K2B_W7")
    g("s_mul_i32 s46, s41, 7")
    g("s_add_u32 s46, s46, s3")
    g("s_lshr_b32 s47, s46, 1")
    g("s_lshl_b32 s47, s47, 7")
    g("v_lshrrev_b32 v4, 5, v1")
    g("v_lshlrev_b32 v4, 4, v4")
    for gp in range(4):
        g(f"buffer_load_dwordx4 v[{BI+4*gp}:{BI+4*gp+3}], v4, s[20:23], s47 offen offset:{gp*32}")
    g("s_lshl_b32 s48, s46, 15")
    g(f"s_add_u32 s48, s48, {W1F}")
    for s in range(32):
        g(f"buffer_load_dwordx4 v[{W+4*s}:{W+4*s+3}], v3, s[36:39], s48 offen offset:{(s&3)*1024}")
        if s & 3 == 3: g("s_add_u32 s48, s48, 4096")
    g("s_and_b32 s47, s46, 1")
    g("s_cmp_eq_u32 s47, 0")
    g("s_cselect_b32 s57, 0x01000c0c, s57") if False else None
    g("s_mov_b32 s56, 0x01000c0c"); g("s_mov_b32 s57, 0x03020c0c")
    g("s_cselect_b32 s57, s56, s57")
    g(f"s_mov_b32 s58, {f32(-2.0/LOG2E)}")
    g(f"v_mov_b32 v2, {f32(1.0/LOG2E)}")
    g(f"s_mov_b32 s59, {f32(LOG2E)}")
    g("s_waitcnt vmcnt(32)")
    for r in range(16):
        g(f"v_perm_b32 v{BI+r}, v{BI+r}, v{BI+r}, s57")
    for r in range(16):
        g(f"v_mul_f32 v{BI+r}, s59, v{BI+r}")
    ST()
    g("s_barrier")
    ST()
    g("s_lshl_b32 s50, s40, 1")
    g("s_mul_i32 s50, s50, 112")
    g("s_lshl_b32 s51, s46, 1")
    g("s_add_u32 s50, s50, s51")
    g("s_lshl_b32 s50, s50, 10")
    g(f"s_add_u32 s50, s50, {ACT}")
    g(f"s_add_u32 s51, s50, {112*1024}")
    seq = [(rt, s) for rt in range(2) for s in range(32)]
    def bload(i):
        rt, s = seq[i]; b = BR + 4*(i % 4)
        g(f"ds_read_b128 v[{b}:{b+3}], v3 offset:{rt*32768 + s*1024}")
    for i in range(4): bload(i)
    ms = []
    for i, (rt, s) in enumerate(seq):
        b = BR + 4*(i % 4); acc = AC0 if rt == 0 else AC1
        vm = f" vmcnt({31-s})" if rt == 0 else ""
        g(f"s_waitcnt lgkmcnt({min(3, 63-i)}){vm}")
        c = f"v[{BI}:{BI+15}]" if s == 0 else f"v[{acc}:{acc+15}]"
        g(f"v_mfma_f32_32x32x16_bf16 v[{acc}:{acc+15}], v[{W+4*s}:{W+4*s+3}], v[{b}:{b+3}], {c}")
        if i + 4 < 64: bload(i + 4)
        if rt == 1:
            if s == 2: ms = mish_stream(g, AC0, 24)
            for _ in range(4):
                if ms: ms.pop(0)()
    while ms: ms.pop(0)()
    g("buffer_store_dwordx4 v[24:27], v3, s[36:39], s50 offen")
    g("buffer_store_dwordx4 v[28:31], v3, s[36:39], s50 offen offset:1024")
    ST()
    for o in mish_stream(g, AC1, 32): o()
    g("buffer_store_dwordx4 v[32:35], v3, s[36:39], s51 offen")
    g("buffer_store_dwordx4 v[36:39], v3, s[36:39], s51 offen offset:1024")
    ST()
    ST.flush(kid=2)
    g("s_endpgm")
    g("K2B_W7:")
    g("s_waitcnt vmcnt(0)")
    g("s_barrier")
    g(f"{END}:")
    g("s_endpgm")
    return g.lines, 65536
```

```python
from common import *

AR = 64
AC = 192
AL = 224
BW = 4
NB = 14
W2L = 0
SLAB = 0; SLAB_ROW = 272; SLAB_SZ = 32*272

def gen_k2c(label, stamps=False):
    g = Gen(); ST = Stamps(g, stamps)
    END = "K2C_END"
    g(f"s_cmp_ge_u32 s2, 256")
    g(f"s_cbranch_scc1 {END}")
    ST()
    g("s_load_dwordx2 s[4:5], s[0:1], 72")
    g("s_load_dwordx2 s[18:19], s[0:1], 88")
    ids(g)
    g("v_lshlrev_b32 v3, 4, v1")
    g("s_and_b32 s44, s3, 3")
    g("s_lshr_b32 s45, s3, 2")
    g("s_waitcnt lgkmcnt(0)")
    srd(g, 20, 4, 0x200000)
    srd(g, 36, 18, WS_SIZE)
    g("s_mul_i32 s46, s41, 112")
    g("s_mul_i32 s47, s44, 28")
    g("s_add_u32 s46, s46, s47")
    g("s_lshl_b32 s46, s46, 11")
    g(f"s_add_u32 s46, s46, {W2F}")
    g("s_mul_i32 s47, s44, 24576")
    g("s_mul_i32 s48, s45, 12288")
    g("s_add_u32 s47, s47, s48")
    g("s_add_u32 s49, s46, s48")
    g(f"s_add_u32 s49, s49, {16*2048}")
    for i in range(3):
        g("s_mov_b32 m0, s47")
        g("s_nop 0")
        for k in range(4): g(f"buffer_load_dwordx4 v3, s[36:39], s49 offen offset:{k*1024} lds")
        if i < 2:
            g("s_add_u32 s47, s47, 4096"); g("s_add_u32 s49, s49, 4096")
    g("s_lshl_b32 s50, s40, 1")
    g("s_add_u32 s50, s50, s45")
    g("s_mul_i32 s50, s50, 112")
    g("s_mul_i32 s51, s44, 28")
    g("s_add_u32 s50, s50, s51")
    g("s_lshl_b32 s50, s50, 10")
    g(f"s_add_u32 s50, s50, {ACT}")
    order = []
    def aload(k):
        for e in range(2):
            r = AR + 8*k + 4*e
            g(f"buffer_load_dwordx4 v[{r}:{r+3}], v3, s[36:39], s46 offen offset:{(k&1)*2048 + e*1024}")
            order.append(("A", k))
        if k & 1: g("s_add_u32 s46, s46, 4096")
    def bload(k):
        r = BW + 4*(k % NB)
        g(f"buffer_load_dwordx4 v[{r}:{r+3}], v3, s[36:39], s50 offen offset:{(k&3)*1024}")
        order.append(("B", k))
        if k & 3 == 3: g("s_add_u32 s50, s50, 4096")
    for k in range(14):
        aload(k); bload(k)
    aload(14); aload(15)
    g("v_lshrrev_b32 v60, 3, v0")
    g("v_and_b32 v61, 7, v0")
    g("v_lshlrev_b32 v62, 10, v60")
    g("v_lshl_add_u32 v62, v61, 4, v62")
    g("s_lshl_b32 s52, s40, 16")
    g("s_lshl_b32 s53, s41, 7")
    g("s_add_u32 s52, s52, s53")
    g(f"s_add_u32 s53, s52, {HB}")
    g("buffer_load_dwordx4 v[244:247], v62, s[36:39], s53 offen")
    order.append(("H", 0))
    g("s_mul_i32 s47, s44, 24576")
    g("v_add_u32 v63, s47, v3")
    ST()
    g(f"s_waitcnt vmcnt({len(order)})")
    g("s_barrier")
    ST()
    issued = list(order)
    def lds_a(k):
        b = AL + 8*(k % 2)
        g(f"ds_read_b128 v[{b}:{b+3}], v63 offset:{(k-16)*2048}")
        g(f"ds_read_b128 v[{b+4}:{b+7}], v63 offset:{(k-16)*2048+1024}")
    for k in range(28):
        need = [("B", k)] + ([("A", k)] if k < 16 else [])
        last = max(max(i for i, o in enumerate(issued) if o == n) for n in need)
        vm = len(issued) - 1 - last
        if k == 15: lds_a(16)
        w = f"s_waitcnt vmcnt({vm})"
        if k >= 16: w += f" lgkmcnt({0 if k == 27 else 2})"
        if 16 <= k < 27: lds_a(k + 1)
        g(w)
        b = BW + 4*(k % NB)
        for e in range(2):
            a = AR + 8*k + 4*e if k < 16 else AL + 8*(k % 2) + 4*e
            acc = AC + 16*e
            c = "0" if k == 0 else f"v[{acc}:{acc+15}]"
            g(f"v_mfma_f32_32x32x16_bf16 v[{acc}:{acc+15}], v[{a}:{a+3}], v[{b}:{b+3}], {c}")
        if k + NB < 28:
            r = BW + 4*(k % NB); kk = k + NB
            g(f"buffer_load_dwordx4 v[{r}:{r+3}], v3, s[36:39], s50 offen offset:{(kk&3)*1024}")
            issued.append(("B", kk))
            if kk & 3 == 3: g("s_add_u32 s50, s50, 4096")
    ST()
    g("s_barrier")
    g("v_and_b32 v4, 31, v1")
    g(f"v_mul_u32_u24 v4, {SLAB_ROW}, v4")
    g("v_lshrrev_b32 v5, 5, v1")
    g("v_lshl_add_u32 v4, v5, 5, v4")
    g(f"s_mul_i32 s47, s3, {SLAB_SZ}")
    g("v_add_u32 v4, s47, v4")
    for gp in range(4):
        g(f"ds_write_b128 v4, v[{AC+4*gp}:{AC+4*gp+3}] offset:{gp*64}")
        g(f"ds_write_b128 v4, v[{AC+16+4*gp}:{AC+16+4*gp+3}] offset:{gp*64+16}")
    g("v_and_b32 v5, 31, v60")
    g(f"v_mul_u32_u24 v5, {SLAB_ROW}, v5")
    g("v_lshl_add_u32 v5, v61, 5, v5")
    g("v_lshrrev_b32 v6, 5, v60")
    g(f"v_mul_u32_u24 v6, {4*SLAB_SZ}, v6")
    g("v_add_u32 v5, v5, v6")
    g("s_waitcnt lgkmcnt(0)")
    g("s_barrier")
    for q in range(4):
        g(f"ds_read_b128 v[{8+8*q}:{11+8*q}], v5 offset:{q*SLAB_SZ}")
        g(f"ds_read_b128 v[{12+8*q}:{15+8*q}], v5 offset:{q*SLAB_SZ+16}")
    g("s_waitcnt vmcnt(0)")
    for rr in range(4):
        g(f"v_lshlrev_b32 v{48+rr}, 16, v{244+rr}")
        g(f"v_and_b32 v{52+rr}, 0xffff0000, v{244+rr}")
    for q in range(4):
        g(f"s_waitcnt lgkmcnt({6-2*q})")
        for r in range(8):
            g(f"v_add_f32 v{48+r}, v{48+r}, v{8+8*q+r}")
    for rr in range(4):
        g(f"v_cvt_pk_bf16_f32 v{56+rr}, v{48+rr}, v{52+rr}")
    g("buffer_store_dwordx4 v[56:59], v62, s[20:23], s52 offen")
    ST()
    ST.flush(kid=3)
    g(f"{END}:")
    g("s_endpgm")
    return g.lines, 98304
```

```python
import sys, importlib
from common import *
import k1
def build(which=("k1",), out=None, stamps=False):
    hdr = open(f"cdna_kernels/{NAME}.s.ref").read().split("; Override launch")[0]
    ks = []
    if "k1" in which:
        l, lds = k1.gen_k1("k1_kernel"); ks.append(("k1_kernel", l, lds, 256))
    if "k2a" in which:
        import k2a
        l, lds = k2a.gen_k2a("k2a_kernel", stamps=stamps); ks.append(("k2a_kernel", l, lds, 256))
    if "k2b" in which:
        import k2b
        l, lds = k2b.gen_k2b("k2b_kernel", stamps=stamps); ks.append(("k2b_kernel", l, lds, 256))
    if "k2c" in which:
        import k2c
        l, lds = k2c.gen_k2c("k2c_kernel", stamps=stamps); ks.append(("k2c_kernel", l, lds, 256))
    txt = hdr
    for lab, l, lds, vg in ks:
        txt += f"; @launch kernel={lab} grid=(256,1,1) block=(512,1,1) lds={lds}\n"
    txt += '.amdgcn_target "amdgcn-amd-amdhsa--gfx950"\n.text\n'
    for lab, l, lds, vg in ks:
        txt += "\n".join(kernel_text(lab, l)) + "\n"
    txt += '.section .rodata,"a"\n'
    for lab, l, lds, vg in ks:
        txt += "\n".join(desc_text(lab, vg)) + "\n"
    if out: open(out, "w").write(txt)
    return txt
if __name__ == "__main__":
    which = sys.argv[1].split(",")
    build(which, sys.argv[2], stamps=(len(sys.argv) > 3))
```

```python
import sys
sys.path.insert(0, 'gen')
from asmfw import *

NAME = "sequential_preLN__grouped_kv_mqa__dense_activation_mish__prompt"
KF = 0x0; VF = 0x10000; QMAX = 0x20000; KMAX = 0x21000; FLAGS = 0x22000
QF = 0x100000; WOF = 0x300000; W1F = 0x400000; W2F = 0x600000
HN = 0x800000; HB = 0xA00000; ACT = 0xC00000
WS_SIZE = 0x1300000
LOG2E = 1.4426950408889634

import struct
def f32(x):
    return "0x%08x" % struct.unpack("<I", struct.pack("<f", x))[0]

def srd(g, d, base, size):
    g(f"s_mov_b32 s{d}, s{base}")
    g(f"s_mov_b32 s{d+1}, s{base+1}")
    g(f"s_mov_b32 s{d+2}, {hex(size)}")
    g(f"s_mov_b32 s{d+3}, 0x00020000")

def ids(g, sw=3, sg=40, sj=41, tmp=42, vlane=1):
    g(f"v_lshrrev_b32 v2, 6, v0")
    g(f"v_and_b32 v{vlane}, 63, v0")
    g(f"v_readfirstlane_b32 s{sw}, v2")
    g(f"s_and_b32 s{sg}, s2, 7")
    g(f"s_lshr_b32 s{tmp}, s2, 6")
    g(f"s_lshl_b32 s{tmp}, s{tmp}, 3")
    g(f"s_or_b32 s{sg}, s{sg}, s{tmp}")
    g(f"s_lshr_b32 s{sj}, s2, 3")
    g(f"s_and_b32 s{sj}, s{sj}, 7")

def kernel_text(label, body_lines, first=False):
    out = []
    out.append(f".globl {label}")
    out.append(".p2align 8")
    out.append(f".type {label},@function")
    out.append(f"{label}:")
    out += fix_hazards(body_lines, verbose=True)
    return out

def desc_text(label, vgpr=256, sgpr=102):
    acc = (vgpr + 3) // 4 * 4
    return [".p2align 6",
            f".amdhsa_kernel {label}",
            f"  .amdhsa_next_free_vgpr {vgpr}",
            f"  .amdhsa_next_free_sgpr {sgpr}",
            f"  .amdhsa_accum_offset {acc}",
            "  .amdhsa_group_segment_fixed_size 0",
            "  .amdhsa_kernarg_size 96",
            "  .amdhsa_user_sgpr_count 2",
            "  .amdhsa_user_sgpr_kernarg_segment_ptr 1",
            "  .amdhsa_system_sgpr_workgroup_id_x 1",
            ".end_amdhsa_kernel"]

def wave_max16x4(g, v, t):
    for r in (8, 4, 2, 1):
        g(f"v_max_f32_dpp v{v}, v{v}, v{v} row_ror:{r} row_mask:0xf bank_mask:0xf")
    g(f"v_mov_b32 v{t}, v{v}")
    g(f"v_permlane16_swap_b32 v{v}, v{t}")
    g(f"v_max_f32 v{v}, v{v}, v{t}")
    g(f"v_mov_b32 v{t}, v{v}")
    g(f"v_permlane32_swap_b32 v{v}, v{t}")
    g(f"v_max_f32 v{v}, v{v}, v{t}")

STAMP_OFF = 0x80000
class Stamps:
    def __init__(self, g, on): self.g = g; self.on = on; self.n = 0
    def alt(self, i):
        import os
        if self.on and os.environ.get("STP") == "attn": self.g(f"s_memtime s[{70+2*i}:{71+2*i}]")
    def __call__(self, i=None):
        if not self.on: return
        import os
        if os.environ.get("STP") == "attn" and i is not None and i >= 2: return
        if i is None: i = self.n
        self.g(f"s_memtime s[{70+2*i}:{71+2*i}]"); self.n = max(self.n, i + 1)
    def real(self, i=None):
        if not self.on: return
        if i is None: i = self.n
        self.g(f"s_memrealtime s[{70+2*i}:{71+2*i}]"); self.n = max(self.n, i + 1)
    def flush(self, srd=36, kid=0):
        if not self.on: return
        g = self.g
        g("s_mov_b64 exec, 1")
        g("s_waitcnt lgkmcnt(0)")
        g("s_lshl_b32 s98, s2, 3"); g("s_add_u32 s98, s98, s3"); g("s_lshl_b32 s98, s98, 6")
        g(f"s_add_u32 s98, s98, {STAMP_OFF + kid*0x20000}")
        g("v_mov_b32 v2, 0")
        for i in range(self.n):
            g(f"v_mov_b32 v3, s{70+2*i}")
            g(f"buffer_store_dword v3, v2, s[{srd}:{srd+3}], s98 offen offset:{4*i}")
        g("s_waitcnt vmcnt(0)")
```

```python
from common import *
X_L = 0; WQ_L = 65536; WKV_L = 131072; ST_L = 147456; CS_L = ST_L + 512; KM_L = CS_L + 256; QM_L = KM_L + 16
QX_L = 0
KV_L = 32768
NEARLY = 7
def slot_of(p): return (p + 57) & 63
KVF = 0x0; KMAXW = 0x21000; FL = 0x22000; FW = 0x2A000
OF = 0x100000; STW = 0xA00000
XR = 16; QR = 24
SPIN = 40000
import os
FORCE_SLOW = os.environ.get("SLOW") == "1"

def cnt4_addr(g, vt):
    g(f"v_and_b32 v{vt+1}, 3, v1")
    g(f"v_lshlrev_b32 v{vt+1}, 6, v{vt+1}")
def cnt4_add(g, srd, off):
    g("s_and_b32 s46, s68, 3"); g("s_lshl_b32 s46, s46, 6")
    g("v_mov_b32 v8, 0"); g("v_mov_b32 v9, 1")
    g("s_mov_b64 exec, 1")
    g(f"buffer_atomic_add v9, v8, s[{srd}:{srd+3}], s46 offen offset:{off} sc1")
    g("s_mov_b64 exec, -1")
def poll_bytes(g, srd, off, lab, vt=8, sct="s69"):
    g(f"s_mov_b32 {sct}, 0")
    cnt4_addr(g, vt)
    g(f"{lab}:")
    g(f"buffer_load_dword v{vt}, v{vt+1}, s[{srd}:{srd+3}], 0 offen offset:{off} sc1")
    g(f"s_add_u32 {sct}, {sct}, 1")
    g("s_waitcnt vmcnt(0)")
    g(f"v_cmp_eq_u32 vcc, 64, v{vt}")
    g("s_cmp_eq_u64 vcc, -1")
    g(f"s_cbranch_scc1 {lab}_D")
    g(f"s_cmp_lt_u32 {sct}, {SPIN}")
    g(f"s_cbranch_scc1 {lab}")
    g(f"{lab}_D:")

def rl_finish(g):
    g("s_mov_b32 s58, 0x05040100")
    g("s_mov_b32 s59, 0x07060302")
    for d in range(4):
        g(f"v_perm_b32 v{40+d}, v{33+2*d}, v{32+2*d}, s58")
        g(f"v_perm_b32 v{44+d}, v{33+2*d}, v{32+2*d}, s59")
    g("buffer_store_dwordx4 v[40:43], v3, s[36:39], s56 offen sc1")
    g("buffer_store_dwordx4 v[44:47], v3, s[36:39], s57 offen sc1")

def phase_a(g, ST):
    g("s_load_dwordx4 s[4:7], s[0:1], 0")
    g("s_load_dwordx4 s[8:11], s[0:1], 16")
    g("s_load_dwordx2 s[12:13], s[0:1], 32")
    g("s_load_dwordx2 s[14:15], s[0:1], 48")
    g("s_load_dwordx4 s[64:67], s[0:1], 56")
    g("s_load_dwordx4 s[16:19], s[0:1], 72")
    g("s_load_dwordx2 s[62:63], s[0:1], 88")
    ids(g)
    g("s_and_b32 s42, s3, 1")
    g("s_lshl_b32 s43, s42, 3")
    g("v_xor_b32 v10, s43, v1")
    g("v_lshlrev_b32 v10, 4, v10")
    for i in range(1, 8):
        g(f"v_xor_b32 v{10+i}, {i<<4}, v10")
    g("v_lshrrev_b32 v18, 2, v1")
    g("v_lshlrev_b32 v18, 10, v18")
    g("v_and_b32 v19, 3, v1")
    g("v_lshlrev_b32 v19, 4, v19")
    g("v_or_b32 v18, v18, v19")
    g("v_lshlrev_b32 v3, 4, v1")
    g("s_lshl_b32 s43, s3, 13")
    g("s_lshl_b32 s44, s40, 16")
    g("s_add_u32 s44, s44, s43")
    g("s_lshl_b32 s68, s40, 3")
    g("s_add_u32 s68, s68, s41")
    g("s_waitcnt lgkmcnt(0)")
    ST(2)
    srd(g, 20, 4, 0x200000)
    srd(g, 24, 6, 0x80000)
    srd(g, 36, 62, WS_SIZE)
    g("s_cmp_lg_u32 s3, 7")
    g("s_cbranch_scc1 A_NZ")
    g("s_getreg_b32 s46, hwreg(HW_REG_XCC_ID)")
    g("s_and_b32 s46, s46, 15")
    g("v_mov_b32 v20, 0")
    g("v_mov_b32 v21, s46")
    g("v_cmp_eq_u32 vcc, 31, v1")
    g("v_cndmask_b32 v20, v20, v21, vcc")
    g("v_lshlrev_b32 v21, 2, v1")
    g("s_lshl_b32 s45, s68, 7")
    g(f"s_add_u32 s45, s45, {FL}")
    g("s_mov_b64 exec, 0xffffffff")
    g("buffer_store_dword v20, v21, s[36:39], s45 offen sc1")
    g("s_mov_b64 exec, -1")
    g("A_NZ:")
    g("s_mov_b32 m0, s43")
    for i in range(4):
        g(f"buffer_load_dwordx4 v{10+i}, s[20:23], s44 offen offset:{i*1024} lds")
    g("s_add_u32 s45, s43, 4096")
    g("s_mov_b32 m0, s45")
    g("s_add_u32 s44, s44, 4096")
    for i in range(4):
        g(f"buffer_load_dwordx4 v{14+i}, s[20:23], s44 offen offset:{i*1024} lds")
    g("s_and_b32 s45, s41, 1")
    g("s_cmp_eq_u32 s45, 0")
    g("s_cselect_b32 s28, s8, s10")
    g("s_cselect_b32 s29, s9, s11")
    g("s_mov_b32 s30, 0x4000")
    g("s_mov_b32 s31, 0x00020000")
    g("s_lshl_b32 s45, s3, 11")
    g(f"s_add_u32 s46, s45, {WKV_L}")
    g("s_mov_b32 m0, s46")
    g("s_nop 0")
    g("buffer_load_dwordx4 v3, s[28:31], s45 offen lds")
    g("buffer_load_dwordx4 v3, s[28:31], s45 offen offset:1024 lds")
    g("s_lshr_b32 s45, s3, 1")
    g("s_lshl_b32 s46, s45, 13")
    g("s_lshl_b32 s47, s42, 15")
    g("s_add_u32 s46, s46, s47")
    g(f"s_add_u32 s46, s46, {WQ_L}")
    g("s_lshl_b32 s47, s45, 17")
    g("s_lshl_b32 s48, s41, 7")
    g("s_add_u32 s47, s47, s48")
    g("s_lshl_b32 s48, s42, 6")
    g("s_add_u32 s47, s47, s48")
    for i in range(8):
        g("s_mov_b32 m0, s46")
        if i < 7: g("s_add_u32 s46, s46, 1024")
        else: g("s_nop 0")
        g("buffer_load_dwordx4 v18, s[24:27], s47 offen lds")
        if i < 7: g("s_add_u32 s47, s47, 16384")
    g("s_lshl_b32 s45, s2, 3")
    g("s_add_u32 s45, s45, s3")
    g("v_and_b32 v20, 31, v1")
    g("v_lshlrev_b32 v20, 2, v20")
    g("v_lshrrev_b32 v21, 5, v1")
    g("s_cmp_ge_u32 s45, 1792")
    g("s_cbranch_scc1 A_WO")
    g("s_cmp_ge_u32 s45, 896")
    g("s_cbranch_scc1 A_W2")
    srd(g, 32, 14, 512*1792*2)
    g("s_lshr_b32 s46, s45, 5")
    g("s_and_b32 s47, s45, 31")
    g("s_lshr_b32 s48, s47, 2")
    g("s_lshl_b32 s48, s48, 6")
    g("s_and_b32 s49, s47, 1")
    g("s_lshl_b32 s49, s49, 5")
    g("s_add_u32 s48, s48, s49")
    g("s_bfe_u32 s49, s47, 0x10001")
    g("s_add_u32 s48, s48, s49")
    g("s_mul_i32 s48, s48, 3584")
    g("s_lshl_b32 s49, s46, 7")
    g("s_add_u32 s48, s48, s49")
    for jj in range(1, 8):
        g(f"s_add_u32 s{48+jj}, s48, {(16*(jj>>2) + 2*(jj&3))*3584}")
    g(f"s_mov_b32 s58, {8*3584}")
    g("v_mul_lo_u32 v21, v21, s58")
    g("v_add_u32 v20, v20, v21")
    g("s_lshl_b32 s56, s46, 16")
    g("s_lshl_b32 s57, s47, 10")
    g("s_add_u32 s56, s56, s57")
    g(f"s_add_u32 s56, s56, {W1F}")
    g(f"s_add_u32 s57, s56, {32*1024}")
    g("s_branch A_GO")
    g("A_W2:")
    srd(g, 32, 66, 1792*512*2)
    g("s_sub_u32 s45, s45, 896")
    g("s_lshr_b32 s46, s45, 3")
    g("s_and_b32 s47, s45, 7")
    g("s_lshr_b32 s48, s46, 2")
    g("s_lshl_b32 s48, s48, 6")
    g("s_and_b32 s49, s46, 1")
    g("s_lshl_b32 s49, s49, 5")
    g("s_add_u32 s48, s48, s49")
    g("s_lshr_b32 s49, s46, 1")
    g("s_and_b32 s49, s49, 1")
    g("s_add_u32 s48, s48, s49")
    g("s_lshl_b32 s48, s48, 10")
    g("s_lshl_b32 s49, s47, 7")
    g("s_add_u32 s48, s48, s49")
    for jj in range(1, 8):
        g(f"s_add_u32 s{48+jj}, s48, {(16*(jj>>2) + 2*(jj&3))*1024}")
    g("v_lshlrev_b32 v21, 13, v21")
    g("v_add_u32 v20, v20, v21")
    g("s_mul_i32 s56, s47, 112")
    g("s_add_u32 s56, s56, s46")
    g("s_lshl_b32 s56, s56, 11")
    g(f"s_add_u32 s56, s56, {W2F}")
    g("s_add_u32 s57, s56, 1024")
    g("s_branch A_GO")
    g("A_WO:")
    srd(g, 32, 12, 0x80000)
    g("s_sub_u32 s45, s45, 1792")
    g("s_lshr_b32 s46, s45, 5")
    g("s_and_b32 s47, s45, 31")
    g("s_lshl_b32 s48, s47, 14")
    g("s_lshl_b32 s49, s46, 7")
    g("s_add_u32 s48, s48, s49")
    for jj in range(1, 8):
        g(f"s_add_u32 s{48+jj}, s48, {(8*(jj>>2) + (jj&3))*1024}")
    g("v_lshlrev_b32 v21, 12, v21")
    g("v_add_u32 v20, v20, v21")
    g("s_lshl_b32 s56, s46, 16")
    g("s_lshl_b32 s57, s47, 10")
    g("s_add_u32 s56, s56, s57")
    g(f"s_add_u32 s56, s56, {WOF}")
    g("s_add_u32 s57, s56, 32768")
    g("A_GO:")
    for jj in range(8):
        g(f"buffer_load_dword v{32+jj}, v20, s[32:35], s{48+jj} offen")
    g("v_lshrrev_b32 v2, 3, v1")
    g("v_and_b32 v22, 7, v1")
    g("v_and_b32 v4, 1, v2")
    g("v_lshlrev_b32 v5, 10, v2")
    g("v_lshl_add_u32 v5, v22, 4, v5")
    g("v_add_u32 v5, s43, v5")
    g("v_lshlrev_b32 v4, 7, v4")
    g("v_add_u32 v6, v5, v4")
    g("v_xor_b32 v4, 128, v4")
    g("v_add_u32 v7, v5, v4")
    g("v_mov_b32 v8, 0x3f803f80")
    for r in range(84, 92): g(f"v_mov_b32 v{r}, 0")
    pass
    g("s_waitcnt vmcnt(18)")
    for i in range(8):
        a = 6 if i % 2 == 0 else 7
        g(f"ds_read_b128 v[{52+4*i}:{55+4*i}], v{a} offset:{(i & ~1)*128}")
    for i in range(8):
        g(f"s_waitcnt lgkmcnt({7-i})")
        for d in range(4):
            r = 52 + 4*i + d
            g(f"v_dot2c_f32_bf16 v{84+d}, v{r}, v8")
            g(f"v_dot2c_f32_bf16 v{88+d}, v{r}, v{r}")
    g("v_add_f32 v84, v84, v85"); g("v_add_f32 v86, v86, v87")
    g("v_add_f32 v88, v88, v89"); g("v_add_f32 v90, v90, v91")
    g("v_add_f32 v84, v84, v86"); g("v_add_f32 v88, v88, v90")
    for m in ("quad_perm:[1,0,3,2]", "quad_perm:[2,3,0,1]", "row_half_mirror"):
        g(f"v_add_f32_dpp v84, v84, v84 {m} row_mask:0xf bank_mask:0xf")
        g(f"v_add_f32_dpp v88, v88, v88 {m} row_mask:0xf bank_mask:0xf")
    g(f"v_mul_f32 v84, {f32(1/512)}, v84")
    g(f"v_mul_f32 v88, {f32(1/512)}, v88")
    g("v_fma_f32 v88, -v84, v84, v88")
    g("v_max_f32 v88, 0, v88")
    g(f"v_add_f32 v88, {f32(1e-5)}, v88")
    g("v_rsq_f32 v88, v88")
    g("v_mul_f32 v89, v84, v88")
    g("v_sub_f32 v89, 0, v89")
    g("v_lshlrev_b32 v5, 3, v2")
    g("s_lshl_b32 s45, s3, 6")
    g(f"s_add_u32 s45, s45, {ST_L}")
    g("v_add_u32 v5, s45, v5")
    g("ds_write_b64 v5, v[88:89]")
    g("s_waitcnt vmcnt(16) lgkmcnt(0)")
    g("s_barrier")
    ST(3)
    g("v_and_b32 v2, 31, v1")
    g("v_lshrrev_b32 v28, 5, v1")
    g("s_lshr_b32 s45, s3, 2")
    g("s_lshl_b32 s45, s45, 2")
    g("s_lshl_b32 s46, s41, 3")
    g("s_add_u32 s45, s45, s46")
    g("v_add_u32 v4, s45, v28")
    g("v_and_b32 v5, 15, v2")
    g("v_xor_b32 v4, v4, v5")
    g("v_lshlrev_b32 v4, 4, v4")
    g("v_lshl_add_u32 v4, v2, 10, v4")
    g("s_bfe_u32 s46, s3, 0x10001")
    g("s_lshl_b32 s46, s46, 15")
    g("v_add_u32 v4, s46, v4")
    g("v_xor_b32 v5, 32, v4")
    g(f"ds_read_b128 v[{XR}:{XR+3}], v4")
    g(f"ds_read_b128 v[{XR+4}:{XR+7}], v5")
    g("s_cmp_eq_u32 s3, 7")
    g("s_cbranch_scc1 A_KV")
    g("s_waitcnt vmcnt(8)")
    g("s_barrier")
    ST(4)
    g("s_cmp_ge_u32 s3, 4")
    g("s_cbranch_scc1 A_AUX")
    g("v_and_b32 v4, 15, v2")
    g("v_xor_b32 v4, v4, v28")
    g("v_lshlrev_b32 v4, 4, v4")
    g("s_lshr_b32 s45, s3, 1")
    g("s_lshl_b32 s46, s45, 15")
    g("v_lshl_add_u32 v4, v2, 10, v4")
    g("v_add_u32 v40, s46, v4")
    for sp in range(1, 8):
        g(f"v_xor_b32 v{40+sp}, {sp<<5}, v40")
    g("v_lshrrev_b32 v5, 5, v1")
    g("v_lshlrev_b32 v5, 9, v5")
    g("v_bfe_u32 v6, v1, 2, 2")
    g("v_lshl_add_u32 v5, v6, 6, v5")
    g("v_bfe_u32 v6, v1, 4, 1")
    g("v_lshl_add_u32 v5, v6, 5, v5")
    g("v_and_b32 v6, 3, v1")
    g("v_lshl_add_u32 v5, v6, 3, v5")
    g("s_lshl_b32 s46, s42, 15")
    g(f"s_add_u32 s46, s46, {WQ_L}")
    g("v_add_u32 v48, s46, v5")
    for r in range(16): g(f"v_mov_b32 v{100+r}, 0")
    def qload(s):
        b = 52 + 8*(s % 4)
        g(f"ds_read_b64_tr_b16 v[{b}:{b+1}], v48 offset:{s*1024}")
        g(f"ds_read_b64_tr_b16 v[{b+2}:{b+3}], v48 offset:{s*1024+256}")
        g(f"ds_read_b128 v[{b+4}:{b+7}], v{40+(s&7)} offset:{(s>>3)*256}")
    for s in range(4): qload(s)
    for s in range(32):
        b = 52 + 8*(s % 4)
        g(f"s_waitcnt lgkmcnt({min(9, 3*(31-s))})")
        g(f"v_mfma_f32_32x32x16_bf16 v[100:115], v[{b}:{b+3}], v[{b+4}:{b+7}], v[100:115]")
        if s + 4 < 32: qload(s + 4)
    ST(5)
    g("s_barrier")
    pass
    g("s_lshl_b32 s46, s45, 8")
    g(f"s_add_u32 s46, s46, {ST_L}")
    g("v_lshlrev_b32 v5, 3, v2")
    g("v_add_u32 v5, s46, v5")
    g("ds_read_b64 v[52:53], v5")
    g("s_lshl_b32 s46, s42, 7")
    g(f"s_add_u32 s46, s46, {CS_L}")
    g("v_lshlrev_b32 v5, 4, v28")
    g("v_add_u32 v5, s46, v5")
    for gp in range(4):
        g(f"ds_read_b128 v[{56+4*gp}:{59+4*gp}], v5 offset:{gp*32}")
    g(f"s_mov_b32 s46, {f32(0.25*LOG2E)}")
    g("s_waitcnt lgkmcnt(0)")
    g("v_mul_f32 v52, s46, v52")
    g("v_mul_f32 v53, s46, v53")
    for r in range(16):
        g(f"v_mul_f32 v{56+r}, v53, v{56+r}")
    for r in range(16):
        g(f"v_fma_f32 v{100+r}, v52, v{100+r}, v{56+r}")
    for r in range(4):
        g(f"v_cvt_pk_bf16_f32 v{80+r}, v{108+2*r}, v{109+2*r}")
    g("s_lshl_b32 s46, s3, 10")
    g(f"v_add_u32 v5, s46, v3")
    g(f"ds_write_b128 v5, v[80:83] offset:{QX_L}")
    for r in range(4):
        g(f"v_cvt_pk_bf16_f32 v{QR+r}, v{100+2*r}, v{101+2*r}")
    g("v_mul_f32 v54, v100, v100")
    g("v_mul_f32 v55, v108, v108")
    for r in range(1, 8):
        g(f"v_fmac_f32 v54, v{100+r}, v{100+r}")
        g(f"v_fmac_f32 v55, v{108+r}, v{108+r}")
    g("v_mov_b32 v56, v54"); g("v_mov_b32 v57, v55")
    g("v_permlane32_swap_b32 v54, v56")
    g("v_permlane32_swap_b32 v55, v57")
    g("v_add_f32 v54, v54, v56"); g("v_add_f32 v55, v55, v57")
    g("v_max_f32 v54, v54, v55")
    wave_max16x4(g, 54, 56)
    g("s_lshl_b32 s46, s3, 2")
    g(f"s_add_u32 s46, s46, {QM_L}")
    g("v_mov_b32 v5, s46")
    g("ds_write_b32 v5, v54")
    g("s_waitcnt vmcnt(0)")
    rl_finish(g)
    g("s_branch A_B4")
    g("A_AUX:")
    g("s_sub_u32 s45, s3, 4")
    for r in range(4):
        g(f"v_mov_b32 v{44+r}, 0x3f803f80")
    g("A_CS:")
    g("v_lshrrev_b32 v5, 4, v1")
    g("v_lshlrev_b32 v5, 9, v5")
    g("v_bfe_u32 v6, v1, 2, 2")
    g("v_lshl_add_u32 v5, v6, 6, v5")
    g("v_and_b32 v6, 3, v1")
    g("v_lshl_add_u32 v5, v6, 3, v5")
    g("s_lshr_b32 s46, s45, 1")
    g("s_lshl_b32 s46, s46, 15")
    g("s_and_b32 s47, s45, 1")
    g("s_lshl_b32 s47, s47, 5")
    g("s_add_u32 s46, s46, s47")
    g(f"s_add_u32 s46, s46, {WQ_L}")
    g("v_add_u32 v48, s46, v5")
    for r in range(4): g(f"v_mov_b32 v{100+r}, 0")
    def cload(s):
        b = 52 + 4*(s % 6)
        g(f"ds_read_b64_tr_b16 v[{b}:{b+1}], v48 offset:{s*2048}")
        g(f"ds_read_b64_tr_b16 v[{b+2}:{b+3}], v48 offset:{s*2048+256}")
    for s in range(6): cload(s)
    for s in range(16):
        b = 52 + 4*(s % 6)
        g(f"s_waitcnt lgkmcnt({min(10, 2*(15-s))})")
        g(f"v_mfma_f32_16x16x32_bf16 v[100:103], v[{b}:{b+3}], v[44:47], v[100:103]")
        if s + 6 < 16: cload(s + 6)
    g("v_lshrrev_b32 v5, 4, v1")
    g("v_lshlrev_b32 v5, 4, v5")
    g("s_lshl_b32 s46, s45, 6")
    g(f"s_add_u32 s46, s46, {CS_L}")
    g("v_add_u32 v5, s46, v5")
    g("ds_write_b128 v5, v[100:103]")
    g("s_add_u32 s45, s45, 1")
    g("s_cmp_eq_u32 s45, 3")
    g("s_cbranch_scc1 A_CS")
    g("s_waitcnt vmcnt(0)")
    rl_finish(g)
    g("s_waitcnt lgkmcnt(0)")
    g("s_barrier")
    g("s_cmp_lg_u32 s3, 4")
    g("s_cbranch_scc1 A_B4")
    srd(g, 24, 18, 256)
    poll_bytes(g, 24, 0, "A_PK")
    ST(5)
    g("s_lshl_b32 s45, s40, 1")
    for p in range(NEARLY):
        g(f"s_add_u32 s46, s45, {p}")
        g("s_and_b32 s46, s46, 63")
        g("s_lshl_b32 s46, s46, 11")
        g(f"s_mov_b32 m0, {KV_L + 2048*slot_of(p)}")
        if KVF: g(f"s_add_u32 s46, s46, {KVF}")
        g("buffer_load_dwordx4 v3, s[36:39], s46 offen lds")
        g("buffer_load_dwordx4 v3, s[36:39], s46 offen offset:1024 lds")
    g("v_lshlrev_b32 v4, 2, v1")
    g(f"s_mov_b32 s46, {KMAXW}")
    g("buffer_load_dword v10, v4, s[36:39], s46 offen sc1")
    g("buffer_load_dword v11, v4, s[36:39], s46 offen offset:256 sc1")
    g("v_and_b32 v4, 7, v1"); g("v_lshlrev_b32 v4, 7, v4")
    g("s_lshl_b32 s46, s40, 10"); g(f"s_add_u32 s46, s46, {FL + 124}")
    g("buffer_load_dword v12, v4, s[36:39], s46 offen sc1")
    g("s_getreg_b32 s46, hwreg(HW_REG_XCC_ID)")
    g("s_and_b32 s46, s46, 15")
    g("s_waitcnt vmcnt(0)")
    g("v_cmp_eq_u32 vcc, s46, v12")
    g("s_cmp_eq_u64 vcc, -1")
    g("s_cselect_b32 s46, 1, 0")
    if FORCE_SLOW: g("s_mov_b32 s46, 0")
    g("v_max_f32 v10, v10, v11")
    wave_max16x4(g, 10, 13)
    g("v_mov_b32 v11, s46")
    g(f"v_mov_b32 v5, {KM_L}")
    g("ds_write_b64 v5, v[10:11]")
    g("s_branch A_B4")
    g("A_KV:")
    g("v_and_b32 v2, 15, v1")
    g("v_lshrrev_b32 v28, 4, v1")
    g("s_lshr_b32 s46, s41, 1")
    g("s_lshl_b32 s47, s46, 14")
    g("v_xor_b32 v4, v2, v28")
    g("v_lshlrev_b32 v4, 4, v4")
    g("v_lshl_add_u32 v4, v2, 10, v4")
    g("v_add_u32 v40, s47, v4")
    for sp in range(1, 4):
        g(f"v_xor_b32 v{40+sp}, {sp<<6}, v40")
    g("v_lshlrev_b32 v5, 8, v28")
    g("v_bfe_u32 v6, v1, 2, 2")
    g("v_lshl_add_u32 v5, v6, 5, v5")
    g("v_and_b32 v6, 3, v1")
    g("v_lshl_add_u32 v5, v6, 3, v5")
    g(f"v_add_u32 v48, {WKV_L}, v5")
    for r in range(4): g(f"v_mov_b32 v{44+r}, 0x3f803f80")
    for r in range(8): g(f"v_mov_b32 v{100+r}, 0")
    def kload(s):
        b = 52 + 8*(s % 4)
        g(f"ds_read_b64_tr_b16 v[{b}:{b+1}], v48 offset:{s*1024}")
        g(f"ds_read_b64_tr_b16 v[{b+2}:{b+3}], v48 offset:{s*1024+128}")
        g(f"ds_read_b128 v[{b+4}:{b+7}], v{40+(s&3)} offset:{(s>>2)*256}")
    g("s_lshl_b32 s47, s40, 1")
    g("s_lshr_b32 s48, s41, 2")
    g("s_add_u32 s47, s47, s48")
    g("s_lshl_b32 s47, s47, 11")
    if KVF: g(f"s_add_u32 s47, s47, {KVF}")
    g("s_and_b32 s48, s46, 1")
    g("s_and_b32 s49, s41, 1")
    g("s_cmp_eq_u32 s49, 1")
    g("s_cbranch_scc1 A_V")
    def kv_gemm(isv):
        for s in range(4): kload(s)
        for s in range(16):
            b = 52 + 8*(s % 4)
            g(f"s_waitcnt lgkmcnt({min(9, 3*(15-s))})")
            if not isv:
                g(f"v_mfma_f32_16x16x32_bf16 v[100:103], v[{b}:{b+3}], v[{b+4}:{b+7}], v[100:103]")
                g(f"v_mfma_f32_16x16x32_bf16 v[104:107], v[{b}:{b+3}], v[44:47], v[104:107]")
            else:
                g(f"v_mfma_f32_16x16x32_bf16 v[100:103], v[{b+4}:{b+7}], v[{b}:{b+3}], v[100:103]")
                g(f"v_mfma_f32_16x16x32_bf16 v[104:107], v[44:47], v[{b}:{b+3}], v[104:107]")
            if s + 4 < 16: kload(s + 4)
        g("s_waitcnt vmcnt(8)")
        g("s_barrier")
    kv_gemm(False)
    g("s_lshl_b32 s50, s46, 7")
    g(f"s_add_u32 s50, s50, {ST_L}")
    g("v_lshlrev_b32 v5, 3, v2")
    g("v_add_u32 v5, s50, v5")
    g("ds_read_b64 v[52:53], v5")
    g("s_waitcnt lgkmcnt(0)")
    for r in range(4): g(f"v_mul_f32 v{104+r}, v53, v{104+r}")
    for r in range(4): g(f"v_fma_f32 v{100+r}, v52, v{100+r}, v{104+r}")
    g("v_cvt_pk_bf16_f32 v80, v100, v101")
    g("v_cvt_pk_bf16_f32 v81, v102, v103")
    g("v_and_b32 v5, 1, v28")
    g("v_lshlrev_b32 v5, 9, v5")
    g("v_lshl_add_u32 v5, v2, 4, v5")
    g("v_lshrrev_b32 v6, 1, v28")
    g("v_lshl_add_u32 v5, v6, 3, v5")
    g("s_lshl_b32 s48, s48, 8")
    g("s_add_u32 s47, s47, s48")
    g("buffer_store_dwordx2 v[80:81], v5, s[36:39], s47 offen sc1")
    g("v_mul_f32 v54, v100, v100")
    for r in range(1, 4): g(f"v_fmac_f32 v54, v{100+r}, v{100+r}")
    g("v_mov_b32 v56, v54")
    g("v_permlane16_swap_b32 v54, v56")
    g("v_add_f32 v54, v54, v56")
    g("v_mov_b32 v56, v54")
    g("v_permlane32_swap_b32 v54, v56")
    g("v_add_f32 v54, v54, v56")
    wave_max16x4(g, 54, 56)
    g("s_lshl_b32 s47, s40, 2")
    g("s_add_u32 s47, s47, s46")
    g("s_lshl_b32 s47, s47, 2")
    g(f"s_add_u32 s47, s47, {KMAXW}")
    g("v_mov_b32 v5, 0")
    g("s_mov_b64 exec, 1")
    g("buffer_store_dword v54, v5, s[36:39], s47 offen sc1")
    g("s_mov_b64 exec, -1")
    g("s_branch A_KVF")
    g("A_V:")
    kv_gemm(True)
    g("s_lshl_b32 s50, s46, 7")
    g(f"s_add_u32 s50, s50, {ST_L}")
    g("v_lshlrev_b32 v5, 5, v28")
    g("v_add_u32 v5, s50, v5")
    g("ds_read_b128 v[52:55], v5")
    g("ds_read_b128 v[56:59], v5 offset:16")
    g("s_waitcnt lgkmcnt(0)")
    for r in range(4): g(f"v_mul_f32 v{104+r}, v{53+2*r}, v{104+r}")
    for r in range(4): g(f"v_fma_f32 v{100+r}, v{52+2*r}, v{100+r}, v{104+r}")
    g("v_cvt_pk_bf16_f32 v80, v100, v101")
    g("v_cvt_pk_bf16_f32 v81, v102, v103")
    g("v_and_b32 v5, 1, v28")
    g("v_lshlrev_b32 v5, 8, v5")
    g("v_lshl_add_u32 v5, v2, 4, v5")
    g("v_lshrrev_b32 v6, 1, v28")
    g("v_lshl_add_u32 v5, v6, 3, v5")
    g("s_lshl_b32 s48, s48, 9")
    g("s_add_u32 s47, s47, s48")
    g("buffer_store_dwordx2 v[80:81], v5, s[36:39], s47 offen offset:1024 sc1")
    g("A_KVF:")
    g("s_waitcnt vmcnt(0)")
    srd(g, 24, 18, 256)
    cnt4_add(g, 24, 0)
    ST(5)
    rl_finish(g)
    g("s_barrier")
    g("A_B4:")
    srd(g, 24, 18, 256)
    g("s_waitcnt lgkmcnt(0)")
    g("s_barrier")
```

```python
from common import *
from kb_a import *
KR = 28; VR = 36; SA = 52; SB = 68; OR_ = 84; WOR = 100
NW1A = 23
def w1reg(s): return 164 + 4*s if s < NW1A else 28 + 4*(s - NW1A)
EX_L = 147456; W2L = 65536; NLF = 10
CS = 68
def hstores(g, items, rb):
    L = g.lab("HS"); D = g.lab("HD")
    g("s_cmp_eq_u32 s62, 0"); g(f"s_cbranch_scc1 {L}")
    for it in items: g(it)
    for it in items:
        op, rest = it.split(" ", 1)
        n = {"buffer_store_dwordx4": 4, "buffer_store_dwordx2": 2}[op]
        a = rest.split(", ", 1)[1]
        g(f"buffer_load_dwordx{n} v[{rb}:{rb+n-1}], {a} sc1")
    g(f"s_branch {D}")
    g(f"{L}:")
    for it in items: g(it + " sc1")
    g(f"{D}:")

def poll_words(g, vaddr, soff, lab, vt=8, sct="s69"):
    g(f"s_mov_b32 {sct}, 0")
    g(f"{lab}:")
    g(f"buffer_load_dword v{vt}, v{vaddr}, s[36:39], {soff} offen sc1")
    g(f"s_add_u32 {sct}, {sct}, 1")
    g("s_waitcnt vmcnt(0)")
    g(f"v_cmp_eq_u32 vcc, 1, v{vt}")
    g("s_cmp_eq_u64 vcc, -1")
    g(f"s_cbranch_scc1 {lab}_D")
    g(f"s_cmp_lt_u32 {sct}, {SPIN}")
    g(f"s_cbranch_scc1 {lab}")
    g(f"{lab}_D:")

def set_flag(g, off):
    L = g.lab("FS"); D = g.lab("FD")
    g("s_lshl_b32 s46, s68, 7")
    g("s_lshl_b32 s47, s3, 2")
    g("s_add_u32 s46, s46, s47")
    g(f"s_add_u32 s46, s46, {FL + off}")
    g("v_mov_b32 v8, 0"); g("v_mov_b32 v9, 1")
    g("s_mov_b64 exec, 1")
    g("s_cmp_eq_u32 s62, 0"); g(f"s_cbranch_scc1 {L}")
    g("buffer_store_dword v9, v8, s[36:39], s46 offen")
    g(f"s_branch {D}")
    g(f"{L}:")
    g("buffer_store_dword v9, v8, s[36:39], s46 offen sc1")
    g(f"{D}:")
    g("s_mov_b64 exec, -1")

def kaddr(p):
    s = slot_of(p); return (4 if s < 32 else 5), 2048*(s & 31)
def kread(g, p):
    v, o = kaddr(p); r = KR + 4*(p % 2)
    g(f"ds_read_b128 v[{r}:{r+3}], v{v} offset:{o}")
def vread(g, p):
    v, o = kaddr(p); r = VR + 8*(p % 2)
    g("s_mov_b64 exec, s[54:55]")
    g(f"ds_read_b128 v[{r}:{r+3}], v{v+2} offset:{o}")
    g(f"ds_read_b128 v[{r+4}:{r+7}], v{v+2} offset:{o+512}")
    g("s_mov_b64 exec, -1")

def kv_dma(g, i):
    L = None
    if i == 7:
        L = g.lab("SKD"); g("s_cmp_lg_u32 s3, 0"); g(f"s_cbranch_scc1 {L}")
    g(f"s_add_u32 s46, s44, {8*i}")
    g("s_and_b32 s46, s46, 63")
    g("s_lshl_b32 s46, s46, 11")
    g(f"s_add_u32 s47, s45, {16384*i}")
    g("s_mov_b32 m0, s47")
    if KVF: g(f"s_add_u32 s46, s46, {KVF}")
    else: g("s_nop 0")
    g("buffer_load_dwordx4 v3, s[36:39], s46 offen lds")
    g("buffer_load_dwordx4 v3, s[36:39], s46 offen offset:1024 lds")
    if L: g(f"{L}:")

def w_loads(g):
    ops = []
    for i in range(16):
        def f(i=i):
            g(f"buffer_load_dwordx4 v[{WOR+4*i}:{WOR+4*i+3}], v3, s[36:39], s50 offen offset:{(i&3)*1024}")
            if i & 3 == 3: g("s_add_u32 s50, s50, 4096")
        ops.append(f)
    for s in range(NW1A):
        def f(s=s):
            r = w1reg(s)
            g(f"buffer_load_dwordx4 v[{r}:{r+3}], v3, s[36:39], s51 offen offset:{(s&3)*1024}")
            if s & 3 == 3: g("s_add_u32 s51, s51, 4096")
        ops.append(f)
    return ops

def fw_set(g):
    L = g.lab("SKF")
    g("s_cmp_lg_u32 s3, 0"); g(f"s_cbranch_scc1 {L}")
    cnt4_add(g, 24, 32)
    g(f"{L}:")

STG = [None]
def attn_tile(g, p, pre=None, ex=None):
    A = SA if p % 2 == 0 else SB
    B = SB if p % 2 == 0 else SA
    last = p == 63
    ex = list(ex or [])
    def X():
        if ex: ex.pop(0)()
    TT = {0: 2, 5: 3, 13: 5, 14: 7, 22: 8, 30: 9, 38: 10, 46: 11, 53: 12, 63: 13}
    if STG[0] and p in TT: STG[0].alt(TT[p])
    if pre: pre()
    if STG[0] and p in (5, 13): STG[0].alt(TT[p] + 1)
    g("s_waitcnt lgkmcnt(0)")
    if p + 2 < 64: kread(g, p + 2)
    g(f"v_exp_f32 v{A+2}, v{A+2}"); g(f"v_exp_f32 v{A+3}, v{A+3}")
    k = KR + 4*((p + 1) % 2)
    if not last:
        g(f"v_mfma_f32_32x32x16_bf16 v[{B}:{B+15}], v[{k}:{k+3}], v[{QR}:{QR+3}], 0")
    if p + 1 < 64: vread(g, p + 1)
    for r in range(4, 8): g(f"v_exp_f32 v{A+r}, v{A+r}")
    for c in range(4): g(f"v_cvt_pk_bf16_f32 v{A+c}, v{A+2*c}, v{A+2*c+1}")
    g(f"v_exp_f32 v{A+8}, v{A+8}"); g(f"v_exp_f32 v{A+9}, v{A+9}")
    v = VR + 8*(p % 2)
    cz = "0" if p == 0 else f"v[{OR_}:{OR_+15}]"
    g(f"v_mfma_f32_32x32x16_bf16 v[{OR_}:{OR_+15}], v[{v}:{v+3}], v[{A}:{A+3}], {cz}")
    X()
    for r in range(10, 16): g(f"v_exp_f32 v{A+r}, v{A+r}")
    for c in range(4, 8): g(f"v_cvt_pk_bf16_f32 v{A+c}, v{A+2*c}, v{A+2*c+1}")
    if not last:
        g(f"v_exp_f32 v{B}, v{B}"); g(f"v_exp_f32 v{B+1}, v{B+1}")
    g(f"v_mfma_f32_32x32x16_bf16 v[{OR_}:{OR_+15}], v[{v+4}:{v+7}], v[{A+4}:{A+7}], v[{OR_}:{OR_+15}]")
    while ex: X()

def attention(g, ST):
    ST(6); STG[0] = ST
    g(f"v_add_u32 v4, {KV_L}, v3")
    g("v_add_u32 v5, 0x10000, v4")
    g("v_and_b32 v6, 15, v1")
    g("v_lshlrev_b32 v6, 4, v6")
    g("v_lshrrev_b32 v7, 5, v1")
    g("v_lshl_add_u32 v6, v7, 8, v6")
    g(f"v_add_u32 v6, {KV_L + 1024}, v6")
    g("v_add_u32 v7, 0x10000, v6")
    g("s_mov_b32 s54, 0x0000ffff"); g("s_mov_b32 s55, 0x0000ffff")
    g(f"v_mov_b32 v8, {KM_L}")
    g("ds_read_b64 v[10:11], v8")
    g("ds_read_b128 v[12:15], v8 offset:16")
    L = g.lab("SKQ")
    g("s_cmp_lt_u32 s3, 4"); g(f"s_cbranch_scc1 {L}")
    g("s_sub_u32 s46, s3, 4"); g("s_lshl_b32 s46, s46, 10")
    g("v_add_u32 v9, s46, v3")
    g(f"ds_read_b128 v[{QR}:{QR+3}], v9 offset:{QX_L}")
    g(f"{L}:")
    kread(g, 0); kread(g, 1)
    for r in range(16): g(f"v_mov_b32 v{VR+r}, 0x3f803f80")
    vread(g, 0)
    g("s_lshl_b32 s44, s40, 1"); g("s_add_u32 s44, s44, s3"); g("s_add_u32 s44, s44, 7")
    g("s_lshl_b32 s45, s3, 11"); g(f"s_add_u32 s45, s45, {KV_L}")
    g("s_lshl_b32 s50, s41, 16")
    g("s_and_b32 s46, s3, 1"); g("s_lshl_b32 s46, s46, 15"); g("s_add_u32 s50, s50, s46")
    g("s_lshr_b32 s46, s3, 2"); g("s_lshl_b32 s46, s46, 14"); g("s_add_u32 s50, s50, s46")
    g(f"s_add_u32 s50, s50, {WOF}")
    g("s_min_u32 s46, s3, 6"); g("s_mul_i32 s47, s41, 7"); g("s_add_u32 s53, s46, s47")
    g("s_lshl_b32 s51, s53, 15"); g(f"s_add_u32 s51, s51, {W1F}")
    g("s_waitcnt lgkmcnt(0)")
    g("v_max_f32 v12, v12, v13"); g("v_max_f32 v14, v14, v15"); g("v_max_f32 v12, v12, v14")
    g("v_mul_f32 v12, v12, v10")
    g("v_readfirstlane_b32 s62, v11")
    g(f"v_mov_b32 v13, {f32(3900.0)}")
    g("v_cmp_le_f32 vcc, v12, v13")
    g("s_cmp_eq_u64 vcc, -1")
    g("s_cbranch_scc0 B_SLOW")
    g(f"v_mfma_f32_32x32x16_bf16 v[{SA}:{SA+15}], v[{KR}:{KR+3}], v[{QR}:{QR+3}], 0")
    g(f"v_exp_f32 v{SA}, v{SA}"); g(f"v_exp_f32 v{SA+1}, v{SA+1}")
    wl = w_loads(g)
    for p in range(64):
        pre = None; ex = []
        if p < 8: ex.append(lambda p=p: kv_dma(g, p))
        if p == 5:
            def pre():
                g("s_waitcnt vmcnt(8)"); g("s_barrier"); fw_set(g)
        if p == 9:
            def f():
                L = g.lab("SKP")
                g("s_cmp_lg_u32 s3, 5"); g(f"s_cbranch_scc1 {L}")
                cnt4_addr(g, 8)
                g("buffer_load_dword v8, v9, s[24:27], 0 offen offset:32 sc1")
                g(f"{L}:")
            ex.append(f)
        if p == 13:
            def pre():
                L = g.lab("SKP")
                g("s_waitcnt vmcnt(0)")
                g("s_cmp_lg_u32 s3, 5"); g(f"s_cbranch_scc1 {L}")
                g("v_cmp_eq_u32 vcc, 64, v8")
                g("s_cmp_eq_u64 vcc, -1")
                g(f"s_cbranch_scc1 {L}")
                poll_bytes(g, 24, 32, "B_PW")
                g(f"{L}:")
                g("s_barrier")
        if p >= 14 and wl: ex.append(wl.pop(0))
        attn_tile(g, p, pre, ex)
    assert not wl
    g("s_branch B_OEPI")
    g("B_SLOW:")
    g("s_barrier")
    for i in range(8): kv_dma(g, i)
    g("s_waitcnt vmcnt(0)")
    g("s_barrier")
    fw_set(g)
    NM = 100
    g("v_mov_b32 v8, v4")
    g("v_mov_b32 v10, 0xff800000")
    g("s_mov_b32 s46, 0")
    g("B_S1:")
    g(f"ds_read_b128 v[{KR}:{KR+3}], v8")
    g("v_add_u32 v8, 2048, v8")
    g("s_waitcnt lgkmcnt(0)")
    g(f"v_mfma_f32_32x32x16_bf16 v[{SA}:{SA+15}], v[{KR}:{KR+3}], v[{QR}:{QR+3}], 0")
    for r in range(0, 16, 2):
        g(f"v_max3_f32 v10, v10, v{SA+r}, v{SA+r+1}")
    g("s_add_u32 s46, s46, 1"); g("s_cmp_lt_u32 s46, 64"); g("s_cbranch_scc1 B_S1")
    g("v_mov_b32 v11, v10")
    g("v_permlane32_swap_b32 v10, v11")
    g("v_max_f32 v10, v10, v11")
    for r in range(16):
        g(f"v_sub_f32 v{NM+r}, 0, v10")
        g(f"v_mov_b32 v{OR_+r}, 0")
    g("v_mov_b32 v8, v4"); g("v_mov_b32 v9, v6")
    g("s_mov_b32 s46, 0")
    g("B_S2:")
    g(f"ds_read_b128 v[{KR}:{KR+3}], v8")
    g("s_mov_b64 exec, s[54:55]")
    g(f"ds_read_b128 v[{VR}:{VR+3}], v9")
    g(f"ds_read_b128 v[{VR+4}:{VR+7}], v9 offset:512")
    g("s_mov_b64 exec, -1")
    g("v_add_u32 v8, 2048, v8"); g("v_add_u32 v9, 2048, v9")
    g("s_waitcnt lgkmcnt(0)")
    g(f"v_mfma_f32_32x32x16_bf16 v[{SA}:{SA+15}], v[{KR}:{KR+3}], v[{QR}:{QR+3}], v[{NM}:{NM+15}]")
    for r in range(16): g(f"v_exp_f32 v{SA+r}, v{SA+r}")
    for c in range(8): g(f"v_cvt_pk_bf16_f32 v{SA+c}, v{SA+2*c}, v{SA+2*c+1}")
    g(f"v_mfma_f32_32x32x16_bf16 v[{OR_}:{OR_+15}], v[{VR}:{VR+3}], v[{SA}:{SA+3}], v[{OR_}:{OR_+15}]")
    g(f"v_mfma_f32_32x32x16_bf16 v[{OR_}:{OR_+15}], v[{VR+4}:{VR+7}], v[{SA+4}:{SA+7}], v[{OR_}:{OR_+15}]")
    g("s_add_u32 s46, s46, 1"); g("s_cmp_lt_u32 s46, 64"); g("s_cbranch_scc1 B_S2")
    poll_bytes(g, 24, 32, "B_PW2")
    for f in w_loads(g): f()
    g("B_OEPI:")
    ST(7)
    g(f"v_rcp_f32 v8, v{OR_+8}")
    for r in range(8): g(f"v_mul_f32 v{OR_+r}, v{OR_+r}, v8")
    for c in range(4): g(f"v_cvt_pk_bf16_f32 v{12+c}, v{OR_+2*c}, v{OR_+2*c+1}")
    g("s_lshl_b32 s46, s41, 2")
    g("s_and_b32 s47, s3, 1"); g("s_lshl_b32 s47, s47, 1"); g("s_add_u32 s46, s46, s47")
    g("s_lshr_b32 s47, s3, 2"); g("s_add_u32 s46, s46, s47")
    g("s_lshl_b32 s46, s46, 10")
    g("s_bfe_u32 s47, s3, 0x10001"); g("s_lshl_b32 s47, s47, 15"); g("s_add_u32 s46, s46, s47")
    g("s_lshl_b32 s52, s40, 16")
    g("s_add_u32 s46, s46, s52")
    g(f"s_add_u32 s46, s46, {OF}")
    hstores(g, ["buffer_store_dwordx4 v[12:15], v3, s[36:39], s46 offen"], 84)
    for s in range(NW1A, 32):
        r = w1reg(s)
        g(f"buffer_load_dwordx4 v[{r}:{r+3}], v3, s[36:39], s51 offen offset:{(s&3)*1024}")
        if s & 3 == 3: g("s_add_u32 s51, s51, 4096")
    g(f"s_waitcnt vmcnt({32-NW1A})")
    set_flag(g, 0)
    for r in range(4): g(f"v_mov_b32 v{64+r}, 0x3f803f80")
    for s in range(32):
        r = w1reg(s)
        c = "0" if s == 0 else f"v[{CS}:{CS+15}]"
        if s == NW1A: g("s_waitcnt vmcnt(1)")
        g(f"v_mfma_f32_32x32x16_bf16 v[{CS}:{CS+15}], v[{r}:{r+3}], v[64:67], {c}")
    g("s_barrier")
    g("v_and_b32 v10, 7, v1"); g("v_lshlrev_b32 v10, 2, v10")
    g("s_lshl_b32 s48, s40, 3"); g("s_add_u32 s48, s48, s3"); g("s_lshl_b32 s48, s48, 7")
    g(f"s_add_u32 s48, s48, {FL}")
    poll_words(g, 10, "s48", "B_PO")
    ST(8)
    def dma8(base):
        g("s_lshl_b32 s46, s3, 12")
        g("s_add_u32 s47, s46, s52"); g(f"s_add_u32 s47, s47, {base}")
        g("s_mov_b32 m0, s46")
        g("s_nop 0")
        for i in range(4): g(f"buffer_load_dwordx4 v3, s[36:39], s47 offen offset:{i*1024} lds")
        g("s_add_u32 s46, s46, 32768"); g("s_add_u32 s47, s47, 32768")
        g("s_mov_b32 m0, s46")
        g("s_nop 0")
        for i in range(4): g(f"buffer_load_dwordx4 v3, s[36:39], s47 offen offset:{i*1024} lds")
    dma8(OF)
    g("s_mul_i32 s46, s41, 112"); g("s_mul_i32 s47, s3, 14"); g("s_add_u32 s46, s46, s47")
    g("s_lshl_b32 s46, s46, 11"); g(f"s_add_u32 s56, s46, {W2F}")
    g(f"s_mul_i32 s47, s3, {NLF*1024}"); g(f"s_add_u32 s47, s47, {W2L}")
    g("s_mov_b32 s46, s56")
    for i in range(NLF):
        if i % 4 == 0:
            g("s_mov_b32 m0, s47")
            g("s_add_u32 s47, s47, 4096")
        g(f"buffer_load_dwordx4 v3, s[36:39], s46 offen offset:{(i&3)*1024} lds")
        if i % 4 == 3: g("s_add_u32 s46, s46, 4096")
    g("s_bfe_u32 s46, s3, 0x10001"); g("s_lshl_b32 s46, s46, 15")
    g("s_lshr_b32 s47, s3, 2"); g("s_lshl_b32 s47, s47, 14"); g("s_add_u32 s46, s46, s47")
    g("v_add_u32 v11, s46, v3")
    g("s_and_b32 s46, s3, 1")
    g("s_cmp_eq_u32 s46, 0")
    g("s_mov_b32 s54, 0x01000c0c"); g("s_mov_b32 s57, 0x03020c0c")
    g("s_cselect_b32 s57, s54, s57")
    for r in range(8): g(f"v_perm_b32 v{XR+r}, v{XR+r}, v{XR+r}, s57")
    g(f"s_waitcnt vmcnt({NLF})")
    g("s_barrier")
    ST(9)
    RING = [64, 24, 12, 4]; AC = OR_
    def bl(i): g(f"ds_read_b128 v[{RING[i%4]}:{RING[i%4]+3}], v11 offset:{i*1024}")
    for i in range(4): bl(i)
    for i in range(16):
        b = RING[i % 4]
        g(f"s_waitcnt lgkmcnt({min(3, 15-i)})")
        c = "0" if i == 0 else f"v[{AC}:{AC+15}]"
        g(f"v_mfma_f32_32x32x16_bf16 v[{AC}:{AC+15}], v[{WOR+4*i}:{WOR+4*i+3}], v[{b}:{b+3}], {c}")
        if i + 4 < 16: bl(i + 4)
    H = 100
    g("s_lshl_b32 s46, s3, 11"); g(f"s_add_u32 s46, s46, {EX_L}")
    g("v_lshlrev_b32 v12, 5, v1")
    g("v_add_u32 v13, s46, v12")
    g("s_xor_b32 s46, s46, 8192")
    g("v_add_u32 v12, s46, v12")
    g("s_cmp_ge_u32 s3, 4"); g("s_cbranch_scc1 B_X1")
    g(f"ds_write_b128 v13, v[{AC+8}:{AC+11}]"); g(f"ds_write_b128 v13, v[{AC+12}:{AC+15}] offset:16")
    for r in range(8): g(f"v_add_f32 v{H+r}, v{AC+r}, v{XR+r}")
    g("s_branch B_X2")
    g("B_X1:")
    g(f"ds_write_b128 v13, v[{AC}:{AC+3}]"); g(f"ds_write_b128 v13, v[{AC+4}:{AC+7}] offset:16")
    for r in range(8): g(f"v_add_f32 v{H+r}, v{AC+8+r}, v{XR+r}")
    g("B_X2:")
    g("s_waitcnt lgkmcnt(0)")
    g("s_barrier")
    g("ds_read_b128 v[84:87], v12"); g("ds_read_b128 v[88:91], v12 offset:16")
    g("s_waitcnt lgkmcnt(0)")
    for r in range(8): g(f"v_add_f32 v{H+r}, v{H+r}, v{84+r}")
    for c in range(4): g(f"v_cvt_pk_bf16_f32 v{12+c}, v{H+2*c}, v{H+2*c+1}")
    g(f"v_add_f32 v8, v{H}, v{H+1}")
    g(f"v_mul_f32 v9, v{H}, v{H}")
    g(f"v_fmac_f32 v9, v{H+1}, v{H+1}")
    for r in range(2, 8):
        g(f"v_add_f32 v8, v8, v{H+r}")
        g(f"v_fmac_f32 v9, v{H+r}, v{H+r}")
    g("v_mov_b32 v64, v8"); g("v_mov_b32 v65, v9")
    g("v_permlane32_swap_b32 v8, v64"); g("v_permlane32_swap_b32 v9, v65")
    g("v_add_f32 v8, v8, v64"); g("v_add_f32 v9, v9, v65")
    g("s_lshl_b32 s46, s41, 2")
    g("s_and_b32 s47, s3, 1"); g("s_lshl_b32 s47, s47, 1"); g("s_add_u32 s46, s46, s47")
    g("s_lshr_b32 s47, s3, 2"); g("s_add_u32 s46, s46, s47")
    g("s_lshl_b32 s46, s46, 10")
    g("s_bfe_u32 s47, s3, 0x10001"); g("s_lshl_b32 s47, s47, 15"); g("s_add_u32 s46, s46, s47")
    g("s_add_u32 s46, s46, s52")
    g(f"s_add_u32 s45, s46, {HN}")
    g("s_lshl_b32 s46, s68, 11")
    g("s_and_b32 s47, s3, 1"); g("s_lshl_b32 s47, s47, 10"); g("s_add_u32 s46, s46, s47")
    g("s_lshr_b32 s47, s3, 2"); g("s_lshl_b32 s47, s47, 9"); g("s_add_u32 s46, s46, s47")
    g("s_bfe_u32 s47, s3, 0x10001"); g("s_lshl_b32 s47, s47, 8"); g("s_add_u32 s46, s46, s47")
    g(f"s_add_u32 s46, s46, {STW}")
    g("v_lshlrev_b32 v11, 3, v1")
    g("v_and_b32 v2, 0xff, v11")
    hstores(g, ["buffer_store_dwordx4 v[12:15], v3, s[36:39], s45 offen",
                "buffer_store_dwordx2 v[8:9], v2, s[36:39], s46 offen"], 84)
    return dma8
```

```python
from common import *
from kb_a import *
from kb_b import *
AC0 = 100; AC1 = 116; BI = 148
BR1 = [132, 136, 140, 144, 84, 88, 92, 96]
NRF = 28 - NLF
W2R = 164
def mish_ops(g, a, t0, t1):
    return [lambda: g(f"v_exp_f32 v{t0}, v{a}"),
            lambda: g(f"v_add_f32 v{t1}, 2.0, v{t0}"),
            lambda: g(f"v_fma_f32 v{t0}, v{t0}, v{t1}, 2.0"),
            lambda: g(f"v_rcp_f32 v{t0}, v{t0}"),
            lambda: g(f"v_fma_f32 v{t0}, v{t0}, s58, v2"),
            lambda: g(f"v_mul_f32 v{a}, v{a}, v{t0}")]
def mish_stream(g, acc, dst, va, vb, T=8):
    ops = []
    for grp in range(4):
        for i in range(4):
            r = 4*grp + i
            ops.append(lambda r=r, i=i: g(f"v_fma_f32 v{T+2*i}, v{vb}, v{CS+r}, v{BI+r}"))
        for i in range(4):
            r = 4*grp + i
            ops.append(lambda r=r, i=i: g(f"v_fma_f32 v{acc+r}, v{va}, v{acc+r}, v{T+2*i}"))
        per = [mish_ops(g, acc + 4*grp + i, T + 2*i, T + 2*i + 1) for i in range(4)]
        for k in range(6):
            for i in range(4): ops.append(per[i][k])
        for i in range(2):
            r = acc + 4*grp + 2*i
            ops.append(lambda r=r, d=dst + 2*grp + i: g(f"v_cvt_pk_bf16_f32 v{d}, v{r}, v{r+1}"))
    return ops

def ffn1(g, ST, dma8):
    srd(g, 20, 64, 1792*2)
    g("s_lshr_b32 s47, s53, 1"); g("s_lshl_b32 s47, s47, 7")
    g("v_lshrrev_b32 v4, 5, v1"); g("v_lshlrev_b32 v4, 4, v4")
    for gp in range(4):
        g(f"buffer_load_dwordx4 v[{BI+4*gp}:{BI+4*gp+3}], v4, s[20:23], s47 offen offset:{gp*32}")
    g("s_waitcnt vmcnt(4)")
    set_flag(g, 32)
    ST(10)
    g("s_add_u32 s49, s48, 32")
    poll_words(g, 10, "s49", "C_PH")
    dma8(HN)
    g("s_lshl_b32 s46, s40, 3"); g("s_add_u32 s46, s46, s3"); g("s_lshl_b32 s46, s46, 11")
    g(f"s_add_u32 s46, s46, {STW}")
    for q in range(4):
        g(f"buffer_load_dwordx2 v[{84+2*q}:{85+2*q}], v11, s[36:39], s46 offen offset:{q*512} sc1")
    g("s_and_b32 s47, s53, 1")
    g("s_cmp_eq_u32 s47, 0")
    g("s_mov_b32 s54, 0x01000c0c"); g("s_mov_b32 s57, 0x03020c0c")
    g("s_cselect_b32 s57, s54, s57")
    g(f"s_mov_b32 s58, {f32(-2.0/LOG2E)}")
    g(f"v_mov_b32 v2, {f32(1.0/LOG2E)}")
    g(f"s_mov_b32 s59, {f32(LOG2E)}")
    for r in range(16): g(f"v_perm_b32 v{BI+r}, v{BI+r}, v{BI+r}, s57")
    for r in range(16): g(f"v_mul_f32 v{BI+r}, s59, v{BI+r}")
    g("s_lshl_b32 s50, s40, 1"); g("s_mul_i32 s50, s50, 112")
    g("s_lshl_b32 s51, s53, 1"); g("s_add_u32 s50, s50, s51")
    g("s_lshl_b32 s50, s50, 10"); g(f"s_add_u32 s50, s50, {ACT}")
    g(f"s_add_u32 s51, s50, {112*1024}")
    g(f"s_add_u32 s60, s56, {NLF*1024}")
    g("s_waitcnt vmcnt(8)")
    g("s_waitcnt vmcnt(0)")
    g("v_add_f32 v84, v84, v86"); g("v_add_f32 v85, v85, v87")
    g("v_add_f32 v88, v88, v90"); g("v_add_f32 v89, v89, v91")
    g("v_add_f32 v84, v84, v88"); g("v_add_f32 v85, v85, v89")
    g("s_lshl_b32 s46, s3, 11"); g("s_xor_b32 s46, s46, 8192"); g(f"s_add_u32 s46, s46, {EX_L}")
    g("v_add_u32 v12, s46, v11")
    g("ds_write_b64 v12, v[84:85]")
    def w2load(i):
        r = W2R + 4*i
        g(f"buffer_load_dwordx4 v[{r}:{r+3}], v3, s[36:39], s60 offen offset:{(i&3)*1024}")
        if i & 3 == 3: g("s_add_u32 s60, s60, 4096")
    g("s_waitcnt lgkmcnt(0)")
    g("s_barrier")
    ST(11)
    g("s_cmp_eq_u32 s3, 7")
    g("s_cbranch_scc1 C_W7")
    seq = [(s, rt) for s in range(32) for rt in range(2)]
    NB = len(BR1)
    g("v_and_b32 v12, 31, v1"); g("v_lshlrev_b32 v12, 3, v12"); g(f"v_add_u32 v12, {EX_L}, v12")
    for rt in range(2):
        for q in range(8):
            g(f"ds_read_b64 v[{100+16*rt+2*q}:{101+16*rt+2*q}], v12 offset:{((q*2048) ^ 8192) + rt*256}")
        if rt == 0: g("s_waitcnt lgkmcnt(7)")
    def bload(i):
        s, rt = seq[i]; b = BR1[i % NB]
        g(f"ds_read_b128 v[{b}:{b+3}], v3 offset:{rt*32768 + s*1024}")
    g("s_waitcnt lgkmcnt(0)")
    for i in range(NB): bload(i)
    def stat_calc(z, va, vb):
        for st in (8, 4, 2):
            for q in range(0, st, 2):
                g(f"v_add_f32 v{z+q}, v{z+q}, v{z+q+st}")
                g(f"v_add_f32 v{z+q+1}, v{z+q+1}, v{z+q+st+1}")
        g(f"v_mul_f32 v{z}, {f32(1/512)}, v{z}")
        g(f"v_mul_f32 v{z+1}, {f32(1/512)}, v{z+1}")
        g(f"v_fma_f32 v{z+1}, -v{z}, v{z}, v{z+1}")
        g(f"v_max_f32 v{z+1}, 0, v{z+1}")
        g(f"v_add_f32 v{z+1}, {f32(1e-5)}, v{z+1}")
        g(f"v_rsq_f32 v{z+1}, v{z+1}")
        g(f"v_mul_f32 v{va}, s59, v{z+1}")
        g(f"v_mul_f32 v{vb}, v{z}, v{va}")
        g(f"v_sub_f32 v{vb}, 0, v{vb}")
    stat_calc(100, 4, 5); stat_calc(116, 6, 7)
    for i, (s, rt) in enumerate(seq):
        b = BR1[i % NB]; acc = AC0 if rt == 0 else AC1
        g(f"s_waitcnt lgkmcnt({min(NB-1, 63-i)})")
        c = "0" if s == 0 else f"v[{acc}:{acc+15}]"
        r = w1reg(s)
        g(f"v_mfma_f32_32x32x16_bf16 v[{acc}:{acc+15}], v[{r}:{r+3}], v[{b}:{b+3}], {c}")
        if i + NB < 64: bload(i + NB)
        if rt == 1 and s < NRF: w2load(s)
    for o in mish_stream(g, AC0, 84, 4, 5): o()
    for o in mish_stream(g, AC1, 92, 6, 7): o()
    hstores(g, ["buffer_store_dwordx4 v[84:87], v3, s[36:39], s50 offen",
                "buffer_store_dwordx4 v[88:91], v3, s[36:39], s50 offen offset:1024",
                "buffer_store_dwordx4 v[92:95], v3, s[36:39], s51 offen",
                "buffer_store_dwordx4 v[96:99], v3, s[36:39], s51 offen offset:1024"], 132)
    g("s_branch C_END")
    g("C_W7:")
    for i in range(NRF): w2load(i)
    g("C_END:")

def ffn2(g, ST):
    AC = 100; AL = 236; HR = 64; BW = 4; NB = 14; NA = 4
    SLAB_ROW = 272; SLAB_RT = 32*272; SLAB_SZ = 2*SLAB_RT
    g("s_waitcnt vmcnt(0)")
    set_flag(g, 64)
    ST(12)
    g("v_lshrrev_b32 v60, 3, v0")
    g("v_and_b32 v61, 7, v0")
    g("v_lshrrev_b32 v62, 5, v60"); g("v_lshlrev_b32 v62, 15, v62")
    g("v_and_b32 v63, 31, v60"); g("v_lshl_add_u32 v62, v63, 4, v62")
    g("v_and_b32 v63, 1, v61"); g("v_lshl_add_u32 v62, v63, 9, v62")
    g("v_bfe_u32 v63, v61, 1, 1"); g("v_lshl_add_u32 v62, v63, 3, v62")
    g("v_lshrrev_b32 v63, 2, v61"); g("v_lshl_add_u32 v62, v63, 10, v62")
    g("s_lshl_b32 s46, s41, 12"); g("v_add_u32 v62, s46, v62")
    g(f"ds_read_b64 v[{HR}:{HR+1}], v62")
    g(f"ds_read_b64 v[{HR+2}:{HR+3}], v62 offset:2048")
    g("v_lshlrev_b32 v62, 10, v60"); g("v_lshl_add_u32 v62, v61, 4, v62")
    g("s_lshl_b32 s53, s41, 7"); g("s_add_u32 s53, s53, s52")
    srd(g, 20, 16, 0x200000)
    g("s_lshl_b32 s50, s40, 1"); g("s_mul_i32 s50, s50, 112")
    g("s_mul_i32 s51, s3, 14"); g("s_add_u32 s50, s50, s51")
    g("s_lshl_b32 s50, s50, 10"); g(f"s_add_u32 s50, s50, {ACT}")
    g(f"s_add_u32 s51, s50, {112*1024}")
    g(f"s_mul_i32 s47, s3, {NLF*1024}"); g(f"s_add_u32 s47, s47, {W2L}")
    g("v_add_u32 v63, s47, v3")
    g("v_and_b32 v2, 7, v1"); g("v_lshlrev_b32 v2, 2, v2")
    g("s_add_u32 s46, s48, 64")
    poll_words(g, 2, "s46", "D_PA", vt=59)
    ST(13)
    seq = [(i, rt) for i in range(14) for rt in range(2)]
    issued = []
    def bload(k):
        i, rt = seq[k]; r = BW + 4*(k % NB); sp = 50 + rt
        g(f"buffer_load_dwordx4 v[{r}:{r+3}], v3, s[36:39], s{sp} offen offset:{(i&3)*1024}")
        issued.append(k)
        if i & 3 == 3: g(f"s_add_u32 s{sp}, s{sp}, 4096")
    for k in range(NB): bload(k)
    def areg(f): return AL + 4*(f % NA) if f < NLF else W2R + 4*(f - NLF)
    def lds_a(f):
        if f < NLF: g(f"ds_read_b128 v[{AL+4*(f%NA)}:{AL+4*(f%NA)+3}], v63 offset:{f*1024}")
    for f in range(NA): lds_a(f)
    nl = NA
    for k, (i, rt) in enumerate(seq):
        vm = len(issued) - 1 - issued.index(k)
        w = f"s_waitcnt vmcnt({vm})"
        if rt == 0 and 2*i < NLF:
            w += f" lgkmcnt({min(nl, NLF) - (2*i + 2)})"
        g(w)
        b = BW + 4*(k % NB)
        for e in range(2):
            a = areg(2*i + e); acc = AC + 32*rt + 16*e
            c = "0" if i == 0 else f"v[{acc}:{acc+15}]"
            g(f"v_mfma_f32_32x32x16_bf16 v[{acc}:{acc+15}], v[{a}:{a+3}], v[{b}:{b+3}], {c}")
        if k + NB < 28: bload(k + NB)
        if rt == 1:
            for f in (2*i + NA, 2*i + NA + 1):
                if f < NLF: lds_a(f); nl = f + 1
    g("s_barrier")
    g("v_and_b32 v4, 31, v1")
    g(f"v_mul_u32_u24 v4, {SLAB_ROW}, v4")
    g("v_lshrrev_b32 v5, 5, v1")
    g("v_lshl_add_u32 v4, v5, 5, v4")
    g(f"s_mul_i32 s47, s3, {SLAB_SZ}")
    g("v_add_u32 v4, s47, v4")
    for rt in range(2):
        a = AC + 32*rt
        for gp in range(4):
            g(f"ds_write_b128 v4, v[{a+4*gp}:{a+4*gp+3}] offset:{rt*SLAB_RT + gp*64}")
            g(f"ds_write_b128 v4, v[{a+16+4*gp}:{a+16+4*gp+3}] offset:{rt*SLAB_RT + gp*64+16}")
    g("v_and_b32 v5, 31, v60")
    g(f"v_mul_u32_u24 v5, {SLAB_ROW}, v5")
    g("v_lshl_add_u32 v5, v61, 5, v5")
    g("v_lshrrev_b32 v6, 5, v60")
    g(f"v_mul_u32_u24 v6, {SLAB_RT}, v6")
    g("v_add_u32 v5, v5, v6")
    g(f"v_add_u32 v6, {4*SLAB_SZ}, v5")
    for d in range(2):
        g(f"v_lshlrev_b32 v{48+2*d}, 16, v{HR+d}")
        g(f"v_and_b32 v{49+2*d}, 0xffff0000, v{HR+d}")
        g(f"v_lshlrev_b32 v{52+2*d}, 16, v{HR+2+d}")
        g(f"v_and_b32 v{53+2*d}, 0xffff0000, v{HR+2+d}")
    g("s_waitcnt lgkmcnt(0)")
    g("s_barrier")
    R = 100
    def rd(q):
        v = 5 if q < 4 else 6
        g(f"ds_read_b128 v[{R+8*q}:{R+8*q+3}], v{v} offset:{(q&3)*SLAB_SZ}")
        g(f"ds_read_b128 v[{R+8*q+4}:{R+8*q+7}], v{v} offset:{(q&3)*SLAB_SZ+16}")
    for q in range(7): rd(q)
    for q in range(8):
        if q == 0:
            g("s_waitcnt lgkmcnt(12)"); rd(7)
            g("s_waitcnt lgkmcnt(14)")
        else:
            g(f"s_waitcnt lgkmcnt({14-2*q})")
        for r in range(8):
            g(f"v_add_f32 v{48+r}, v{48+r}, v{R+8*q+r}")
    for rr in range(4):
        g(f"v_cvt_pk_bf16_f32 v{56+rr}, v{48+rr}, v{52+rr}")
    g("buffer_store_dwordx4 v[56:59], v62, s[20:23], s53 offen")
```

```python
import sys
from common import *
import kb_a, kb_b, kb_c
def gen(label, stamps=False):
    g = Gen(); ST = Stamps(g, stamps)
    g("s_cmp_ge_u32 s2, 256")
    g("s_cbranch_scc1 K_END")
    ST.real(0); ST(1)
    kb_a.phase_a(g, ST)
    dma8 = kb_b.attention(g, ST)
    kb_c.ffn1(g, ST, dma8)
    kb_c.ffn2(g, ST)
    if stamps:
        g("s_memtime s[98:99]")
        g("s_waitcnt lgkmcnt(0)")
        g("v_mov_b32 v20, s98")
        g("s_mov_b64 exec, 1")
        g("s_lshl_b32 s98, s2, 3"); g("s_add_u32 s98, s98, s3"); g("s_lshl_b32 s98, s98, 6")
        g(f"s_add_u32 s98, s98, {STAMP_OFF}")
        g("v_mov_b32 v2, 0")
        for i in range(14):
            g(f"v_mov_b32 v3, s{70+2*i}")
            g(f"buffer_store_dword v3, v2, s[36:39], s98 offen offset:{4*i}")
        g("buffer_store_dword v20, v2, s[36:39], s98 offen offset:56")
        g("s_memrealtime s[70:71]")
        g("s_waitcnt lgkmcnt(0)")
        g("v_mov_b32 v3, s70")
        g("buffer_store_dword v3, v2, s[36:39], s98 offen offset:60")
        g("s_waitcnt vmcnt(0)")
    g("K_END:")
    g("s_endpgm")
    return g.lines, 163840
def build(out, stamps=False):
    lab = NAME + "_kernel"
    hdr = open(f"cdna_kernels/{NAME}.s.ref").read().split("; Override launch")[0]
    l, lds = gen(lab, stamps)
    txt = hdr + f"; @launch grid=(256,1,1) block=(512,1,1) lds={lds}\n"
    txt += '.amdgcn_target "amdgcn-amd-amdhsa--gfx950"\n.text\n'
    txt += "\n".join(kernel_text(lab, l)) + "\n"
    txt += '.section .rodata,"a"\n' + "\n".join(desc_text(lab, 256)) + "\n"
    open(out, "w").write(txt)
if __name__ == "__main__":
    build(sys.argv[1], stamps=(len(sys.argv) > 2))
```

```python
from common import *
X_L = 0; WQ_L = 65536; WKV_L = 131072; ST_L = 147456; CS_L = ST_L + 512; KM_L = CS_L + 256; QM_L = KM_L + 16
QX_L = 0
KV_L = 32768
NEARLY = 7
def slot_of(p): return (p + 57) & 63
KVF = 0x0; KMAXW = 0x21000; FL = 0x22000; FW = 0x2A000
OF = 0x100000; STW = 0xA00000
XR = 16; QR = 24
SPIN = 40000
import os
FORCE_SLOW = os.environ.get("SLOW") == "1"

def cnt4_addr(g, vt):
    g(f"v_and_b32 v{vt+1}, 3, v1")
    g(f"v_lshlrev_b32 v{vt+1}, 6, v{vt+1}")
GO = os.environ.get("GO", "1") == "1"
NC1 = os.environ.get("NC1") == "1"
DIRECT = os.environ.get("DIRECT", "1") == "1"
PSC = os.environ.get("PSC", "sc1")
SSC = os.environ.get("SSC", "sc1")
PSL = int(os.environ.get("PSL", "0"))
KV2 = int(os.environ.get("KV2", "0"))
GO2 = os.environ.get("GO", "1") == "2"
KVDBG = os.environ.get("KVDBG") == "1"
def cnt4_add(g, srd, off, ret=False):
    g("s_and_b32 s46, s68, 3"); g("s_lshl_b32 s46, s46, 6")
    g("v_mov_b32 v8, 0"); g("v_mov_b32 v9, 1")
    g("s_mov_b64 exec, 1")
    g(f"buffer_atomic_add v9, v8, s[{srd}:{srd+3}], s46 offen offset:{off} {'sc0 ' if ret else ''}sc1")
    if ret: g("s_waitcnt vmcnt(0)")
    g("s_mov_b64 exec, -1")
P4 = os.environ.get("P4", "1") == "1"
def poll_bytes(g, srd, off, lab, vt=8, sct="s69"):
    g(f"s_mov_b32 {sct}, 0")
    cnt4_addr(g, vt)
    if P4: g("s_mov_b64 exec, 15")
    g(f"{lab}:")
    g(f"buffer_load_dword v{vt}, v{vt+1}, s[{srd}:{srd+3}], 0 offen offset:{off} sc1")
    g(f"s_add_u32 {sct}, {sct}, 1")
    g("s_waitcnt vmcnt(0)")
    g(f"v_cmp_eq_u32 vcc, 64, v{vt}")
    g(f"s_cmp_eq_u64 vcc, {15 if P4 else -1}")
    g(f"s_cbranch_scc1 {lab}_D")
    g(f"s_cmp_lt_u32 {sct}, {SPIN}")
    g(f"s_cbranch_scc1 {lab}")
    g(f"{lab}_D:")
    if P4: g("s_mov_b64 exec, -1")

RLLATE = os.environ.get("RLLATE", "0") == "1"
def rl_finish(g, late=False):
    if late != RLLATE: return
    if late: g("s_waitcnt vmcnt(0)")
    g("s_mov_b32 s58, 0x05040100")
    g("s_mov_b32 s59, 0x07060302")
    for d in range(4):
        g(f"v_perm_b32 v{40+d}, v{33+2*d}, v{32+2*d}, s58")
        g(f"v_perm_b32 v{44+d}, v{33+2*d}, v{32+2*d}, s59")
    g("buffer_store_dwordx4 v[40:43], v3, s[36:39], s56 offen sc1")
    g("buffer_store_dwordx4 v[44:47], v3, s[36:39], s57 offen sc1")

def stats(g):
    g("v_lshrrev_b32 v2, 3, v1")
    g("v_and_b32 v14, 7, v1")
    g("v_and_b32 v4, 1, v2")
    g("v_lshlrev_b32 v5, 10, v2")
    g("v_lshl_add_u32 v5, v14, 4, v5")
    g("s_lshl_b32 s45, s60, 13")
    g("v_add_u32 v5, s45, v5")
    g("v_lshlrev_b32 v4, 7, v4")
    g("v_add_u32 v6, v5, v4")
    g("v_xor_b32 v4, 128, v4")
    g("v_add_u32 v7, v5, v4")
    for i in range(8):
        a = 6 if i % 2 == 0 else 7
        g(f"ds_read_b128 v[{52+4*i}:{55+4*i}], v{a} offset:{(i & ~1)*128}")
    g("v_mov_b32 v8, 0x3f803f80")
    for r in range(84, 92): g(f"v_mov_b32 v{r}, 0")
    for i in range(8):
        g(f"s_waitcnt lgkmcnt({7-i})")
        for d in range(4):
            r = 52 + 4*i + d
            g(f"v_dot2c_f32_bf16 v{84+d}, v{r}, v8")
            g(f"v_dot2c_f32_bf16 v{88+d}, v{r}, v{r}")
    g("v_add_f32 v84, v84, v85"); g("v_add_f32 v86, v86, v87")
    g("v_add_f32 v88, v88, v89"); g("v_add_f32 v90, v90, v91")
    g("v_add_f32 v84, v84, v86"); g("v_add_f32 v88, v88, v90")
    for m in ("quad_perm:[1,0,3,2]", "quad_perm:[2,3,0,1]", "row_half_mirror"):
        g(f"v_add_f32_dpp v84, v84, v84 {m} row_mask:0xf bank_mask:0xf")
        g(f"v_add_f32_dpp v88, v88, v88 {m} row_mask:0xf bank_mask:0xf")
    g(f"v_mul_f32 v84, {f32(1/512)}, v84")
    g(f"v_mul_f32 v88, {f32(1/512)}, v88")
    g("v_fma_f32 v88, -v84, v84, v88")
    g("v_max_f32 v88, 0, v88")
    g(f"v_add_f32 v88, {f32(1e-5)}, v88")
    g("v_rsq_f32 v88, v88")
    g("v_mul_f32 v89, v84, v88")
    g("v_sub_f32 v89, 0, v89")
    g("v_lshlrev_b32 v5, 3, v2")
    g("s_lshl_b32 s45, s60, 6")
    g(f"s_add_u32 s45, s45, {ST_L}")
    g("v_add_u32 v5, s45, v5")
    g("ds_write_b64 v5, v[88:89]")

def xres(g):
    g("v_and_b32 v2, 31, v1")
    g("v_lshrrev_b32 v28, 5, v1")
    g("s_lshr_b32 s45, s3, 2")
    g("s_lshl_b32 s45, s45, 2")
    g("s_lshl_b32 s61, s41, 3")
    g("s_add_u32 s45, s45, s61")
    g("v_add_u32 v4, s45, v28")
    g("v_and_b32 v5, 15, v2")
    g("v_xor_b32 v4, v4, v5")
    g("v_lshlrev_b32 v4, 4, v4")
    g("v_lshl_add_u32 v4, v2, 10, v4")
    g("s_bfe_u32 s61, s3, 0x10001")
    g("s_lshl_b32 s61, s61, 15")
    g("v_add_u32 v4, s61, v4")
    g("v_xor_b32 v5, 32, v4")
    g(f"ds_read_b128 v[{XR}:{XR+3}], v4")
    g(f"ds_read_b128 v[{XR+4}:{XR+7}], v5")

def phase_a(g, ST):
    g("s_load_dwordx4 s[4:7], s[0:1], 0")
    g("s_load_dwordx4 s[8:11], s[0:1], 16")
    g("s_load_dwordx2 s[12:13], s[0:1], 32")
    g("s_load_dwordx2 s[14:15], s[0:1], 48")
    g("s_load_dwordx4 s[64:67], s[0:1], 56")
    g("s_load_dwordx4 s[16:19], s[0:1], 72")
    g("s_load_dwordx2 s[62:63], s[0:1], 88")
    ids(g)
    g("s_and_b32 s42, s3, 1")
    g("s_lshl_b32 s43, s42, 3")
    g("v_xor_b32 v10, s43, v1")
    g("v_lshlrev_b32 v10, 4, v10")
    for i in range(1, 8):
        g(f"v_xor_b32 v{10+i}, {i<<4}, v10")
    g("v_lshrrev_b32 v18, 2, v1")
    g("v_lshlrev_b32 v18, 10, v18")
    g("v_and_b32 v19, 3, v1")
    g("v_lshlrev_b32 v19, 4, v19")
    g("v_or_b32 v18, v18, v19")
    g("v_lshlrev_b32 v3, 4, v1")
    g("s_lshl_b32 s43, s3, 13")
    g("s_lshl_b32 s44, s40, 16")
    g("s_add_u32 s44, s44, s43")
    g("s_lshl_b32 s68, s40, 3")
    g("s_add_u32 s68, s68, s41")
    g("s_waitcnt lgkmcnt(0)")
    ST(2)
    srd(g, 20, 4, 0x200000)
    srd(g, 24, 6, 0x80000)
    srd(g, 36, 62, WS_SIZE)
    g("s_cmp_lg_u32 s3, 7")
    g("s_cbranch_scc1 A_NZ")
    g("s_getreg_b32 s46, hwreg(HW_REG_XCC_ID)")
    g("s_and_b32 s46, s46, 15")
    g("v_mov_b32 v20, 0")
    g("v_mov_b32 v21, s46")
    g("v_cmp_eq_u32 vcc, 31, v1")
    g("v_cndmask_b32 v20, v20, v21, vcc")
    g("v_lshlrev_b32 v21, 2, v1")
    g("s_lshl_b32 s45, s68, 7")
    g(f"s_add_u32 s45, s45, {FL}")
    g("s_mov_b64 exec, 0xffffffff")
    g("buffer_store_dword v20, v21, s[36:39], s45 offen sc1")
    g("s_mov_b64 exec, -1")
    g("A_NZ:")
    g("s_mov_b32 m0, s43")
    for i in range(4):
        g(f"buffer_load_dwordx4 v{10+i}, s[20:23], s44 offen offset:{i*1024} lds")
    g("s_add_u32 s45, s43, 4096")
    g("s_mov_b32 m0, s45")
    g("s_add_u32 s44, s44, 4096")
    for i in range(4):
        g(f"buffer_load_dwordx4 v{14+i}, s[20:23], s44 offen offset:{i*1024} lds")
    g("s_and_b32 s45, s41, 1")
    g("s_cmp_eq_u32 s45, 0")
    g("s_cselect_b32 s28, s8, s10")
    g("s_cselect_b32 s29, s9, s11")
    g("s_mov_b32 s30, 0x4000")
    g("s_mov_b32 s31, 0x00020000")
    g("s_lshl_b32 s45, s3, 11")
    g(f"s_add_u32 s46, s45, {WKV_L}")
    g("s_mov_b32 m0, s46")
    g("s_nop 0")
    g("buffer_load_dwordx4 v3, s[28:31], s45 offen lds")
    g("buffer_load_dwordx4 v3, s[28:31], s45 offen offset:1024 lds")
    g("s_lshr_b32 s45, s3, 1")
    g("s_lshl_b32 s46, s45, 13")
    g("s_lshl_b32 s47, s42, 15")
    g("s_add_u32 s46, s46, s47")
    g(f"s_add_u32 s46, s46, {WQ_L}")
    g("s_lshl_b32 s47, s45, 17")
    g("s_lshl_b32 s48, s41, 7")
    g("s_add_u32 s47, s47, s48")
    g("s_lshl_b32 s48, s42, 6")
    g("s_add_u32 s47, s47, s48")
    for i in range(8):
        g("s_mov_b32 m0, s46")
        if i < 7: g("s_add_u32 s46, s46, 1024")
        else: g("s_nop 0")
        g("buffer_load_dwordx4 v18, s[24:27], s47 offen lds")
        if i < 7: g("s_add_u32 s47, s47, 16384")
    g("s_lshl_b32 s45, s2, 3")
    g("s_add_u32 s45, s45, s3")
    g("v_and_b32 v20, 31, v1")
    g("v_lshlrev_b32 v20, 2, v20")
    g("v_lshrrev_b32 v21, 5, v1")
    g("s_cmp_ge_u32 s45, 1792")
    g("s_cbranch_scc1 A_WO")
    g("s_cmp_ge_u32 s45, 896")
    g("s_cbranch_scc1 A_W2")
    srd(g, 32, 14, 512*1792*2)
    g("s_lshr_b32 s46, s45, 5")
    g("s_and_b32 s47, s45, 31")
    g("s_lshr_b32 s48, s47, 2")
    g("s_lshl_b32 s48, s48, 6")
    g("s_and_b32 s49, s47, 1")
    g("s_lshl_b32 s49, s49, 5")
    g("s_add_u32 s48, s48, s49")
    g("s_bfe_u32 s49, s47, 0x10001")
    g("s_add_u32 s48, s48, s49")
    g("s_mul_i32 s48, s48, 3584")
    g("s_lshl_b32 s49, s46, 7")
    g("s_add_u32 s48, s48, s49")
    for jj in range(1, 8):
        g(f"s_add_u32 s{48+jj}, s48, {(16*(jj>>2) + 2*(jj&3))*3584}")
    g(f"s_mov_b32 s58, {8*3584}")
    g("v_mul_lo_u32 v21, v21, s58")
    g("v_add_u32 v20, v20, v21")
    g("s_lshl_b32 s56, s46, 16")
    g("s_lshl_b32 s57, s47, 10")
    g("s_add_u32 s56, s56, s57")
    g(f"s_add_u32 s56, s56, {W1F}")
    g(f"s_add_u32 s57, s56, {32*1024}")
    g("s_branch A_GO")
    g("A_W2:")
    srd(g, 32, 66, 1792*512*2)
    g("s_sub_u32 s45, s45, 896")
    g("s_lshr_b32 s46, s45, 3")
    g("s_and_b32 s47, s45, 7")
    g("s_lshr_b32 s48, s46, 2")
    g("s_lshl_b32 s48, s48, 6")
    g("s_and_b32 s49, s46, 1")
    g("s_lshl_b32 s49, s49, 5")
    g("s_add_u32 s48, s48, s49")
    g("s_lshr_b32 s49, s46, 1")
    g("s_and_b32 s49, s49, 1")
    g("s_add_u32 s48, s48, s49")
    g("s_lshl_b32 s48, s48, 10")
    g("s_lshl_b32 s49, s47, 7")
    g("s_add_u32 s48, s48, s49")
    for jj in range(1, 8):
        g(f"s_add_u32 s{48+jj}, s48, {(16*(jj>>2) + 2*(jj&3))*1024}")
    g("v_lshlrev_b32 v21, 13, v21")
    g("v_add_u32 v20, v20, v21")
    g("s_mul_i32 s56, s47, 112")
    g("s_add_u32 s56, s56, s46")
    g("s_lshl_b32 s56, s56, 11")
    g(f"s_add_u32 s56, s56, {W2F}")
    g("s_add_u32 s57, s56, 1024")
    g("s_branch A_GO")
    g("A_WO:")
    srd(g, 32, 12, 0x80000)
    g("s_sub_u32 s45, s45, 1792")
    g("s_lshr_b32 s46, s45, 5")
    g("s_and_b32 s47, s45, 31")
    g("s_lshl_b32 s48, s47, 14")
    g("s_lshl_b32 s49, s46, 7")
    g("s_add_u32 s48, s48, s49")
    for jj in range(1, 8):
        g(f"s_add_u32 s{48+jj}, s48, {(8*(jj>>2) + (jj&3))*1024}")
    g("v_lshlrev_b32 v21, 12, v21")
    g("v_add_u32 v20, v20, v21")
    g("s_lshl_b32 s56, s46, 16")
    g("s_lshl_b32 s57, s47, 10")
    g("s_add_u32 s56, s56, s57")
    g(f"s_add_u32 s56, s56, {WOF}")
    g("s_add_u32 s57, s56, 32768")
    g("A_GO:")
    for jj in range(8):
        g(f"buffer_load_dword v{32+jj}, v20, s[32:35], s{48+jj} offen")
    g("s_and_b32 s60, s41, 6")
    g("s_add_u32 s60, s60, s3")
    g("s_add_u32 s60, s60, 3")
    g("s_and_b32 s60, s60, 7")
    g("s_cmp_eq_u32 s3, 7")
    g("s_cbranch_scc1 A_KV")
    g("s_waitcnt vmcnt(16)")
    g("s_barrier")
    ST(3)
    g("s_cmp_ge_u32 s3, 5")
    g("s_cbranch_scc1 A_ST2")
    g("s_barrier")
    stats(g)
    g("s_branch A_ST3")
    g("A_ST2:")
    stats(g)
    g("s_waitcnt lgkmcnt(0)")
    g("s_barrier")
    g("A_ST3:")
    xres(g)
    g("s_waitcnt lgkmcnt(0)")
    g("s_waitcnt vmcnt(8)")
    g("s_barrier")
    ST(4)
    g("s_cmp_ge_u32 s3, 4")
    g("s_cbranch_scc1 A_AUX")
    g("v_and_b32 v4, 15, v2")
    g("v_xor_b32 v4, v4, v28")
    g("v_lshlrev_b32 v4, 4, v4")
    g("s_lshr_b32 s45, s3, 1")
    g("s_lshl_b32 s46, s45, 15")
    g("v_lshl_add_u32 v4, v2, 10, v4")
    g("v_add_u32 v40, s46, v4")
    for sp in range(1, 8):
        g(f"v_xor_b32 v{40+sp}, {sp<<5}, v40")
    g("v_lshrrev_b32 v5, 5, v1")
    g("v_lshlrev_b32 v5, 9, v5")
    g("v_bfe_u32 v6, v1, 2, 2")
    g("v_lshl_add_u32 v5, v6, 6, v5")
    g("v_bfe_u32 v6, v1, 4, 1")
    g("v_lshl_add_u32 v5, v6, 5, v5")
    g("v_and_b32 v6, 3, v1")
    g("v_lshl_add_u32 v5, v6, 3, v5")
    g("s_lshl_b32 s46, s42, 15")
    g(f"s_add_u32 s46, s46, {WQ_L}")
    g("v_add_u32 v48, s46, v5")
    for r in range(16): g(f"v_mov_b32 v{100+r}, 0")
    def qload(s):
        b = 52 + 8*(s % 4)
        g(f"ds_read_b64_tr_b16 v[{b}:{b+1}], v48 offset:{s*1024}")
        g(f"ds_read_b64_tr_b16 v[{b+2}:{b+3}], v48 offset:{s*1024+256}")
        g(f"ds_read_b128 v[{b+4}:{b+7}], v{40+(s&7)} offset:{(s>>3)*256}")
    for s in range(4): qload(s)
    for s in range(32):
        b = 52 + 8*(s % 4)
        g(f"s_waitcnt lgkmcnt({min(9, 3*(31-s))})")
        g(f"v_mfma_f32_32x32x16_bf16 v[100:115], v[{b}:{b+3}], v[{b+4}:{b+7}], v[100:115]")
        if s + 4 < 32: qload(s + 4)
    ST(5)
    g("s_barrier")
    pass
    g("s_lshl_b32 s46, s45, 8")
    g(f"s_add_u32 s46, s46, {ST_L}")
    g("v_lshlrev_b32 v5, 3, v2")
    g("v_add_u32 v5, s46, v5")
    g("ds_read_b64 v[52:53], v5")
    g("s_lshl_b32 s46, s42, 7")
    g(f"s_add_u32 s46, s46, {CS_L}")
    g("v_lshlrev_b32 v5, 4, v28")
    g("v_add_u32 v5, s46, v5")
    for gp in range(4):
        g(f"ds_read_b128 v[{56+4*gp}:{59+4*gp}], v5 offset:{gp*32}")
    g(f"s_mov_b32 s46, {f32(0.25*LOG2E)}")
    g("s_waitcnt lgkmcnt(0)")
    g("v_mul_f32 v52, s46, v52")
    g("v_mul_f32 v53, s46, v53")
    for r in range(16):
        g(f"v_mul_f32 v{56+r}, v53, v{56+r}")
    for r in range(16):
        g(f"v_fma_f32 v{100+r}, v52, v{100+r}, v{56+r}")
    for r in range(4):
        g(f"v_cvt_pk_bf16_f32 v{80+r}, v{108+2*r}, v{109+2*r}")
    g("s_lshl_b32 s46, s3, 10")
    g(f"v_add_u32 v5, s46, v3")
    g(f"ds_write_b128 v5, v[80:83] offset:{QX_L}")
    for r in range(4):
        g(f"v_cvt_pk_bf16_f32 v{QR+r}, v{100+2*r}, v{101+2*r}")
    g("v_mul_f32 v54, v100, v100")
    g("v_mul_f32 v55, v108, v108")
    for r in range(1, 8):
        g(f"v_fmac_f32 v54, v{100+r}, v{100+r}")
        g(f"v_fmac_f32 v55, v{108+r}, v{108+r}")
    g("v_mov_b32 v56, v54"); g("v_mov_b32 v57, v55")
    g("v_permlane32_swap_b32 v54, v56")
    g("v_permlane32_swap_b32 v55, v57")
    g("v_add_f32 v54, v54, v56"); g("v_add_f32 v55, v55, v57")
    g("v_max_f32 v54, v54, v55")
    wave_max16x4(g, 54, 56)
    g("s_lshl_b32 s46, s3, 2")
    g(f"s_add_u32 s46, s46, {QM_L}")
    g("v_mov_b32 v5, s46")
    g("ds_write_b32 v5, v54")
    g("s_waitcnt vmcnt(0)")
    rl_finish(g)
    g("s_branch A_B4")
    g("A_AUX:")
    g("s_sub_u32 s45, s3, 4")
    for r in range(4):
        g(f"v_mov_b32 v{44+r}, 0x3f803f80")
    g("A_CS:")
    g("v_lshrrev_b32 v5, 4, v1")
    g("v_lshlrev_b32 v5, 9, v5")
    g("v_bfe_u32 v6, v1, 2, 2")
    g("v_lshl_add_u32 v5, v6, 6, v5")
    g("v_and_b32 v6, 3, v1")
    g("v_lshl_add_u32 v5, v6, 3, v5")
    g("s_lshr_b32 s46, s45, 1")
    g("s_lshl_b32 s46, s46, 15")
    g("s_and_b32 s47, s45, 1")
    g("s_lshl_b32 s47, s47, 5")
    g("s_add_u32 s46, s46, s47")
    g(f"s_add_u32 s46, s46, {WQ_L}")
    g("v_add_u32 v48, s46, v5")
    for r in range(4): g(f"v_mov_b32 v{100+r}, 0")
    def cload(s):
        b = 52 + 4*(s % 6)
        g(f"ds_read_b64_tr_b16 v[{b}:{b+1}], v48 offset:{s*2048}")
        g(f"ds_read_b64_tr_b16 v[{b+2}:{b+3}], v48 offset:{s*2048+256}")
    for s in range(6): cload(s)
    for s in range(16):
        b = 52 + 4*(s % 6)
        g(f"s_waitcnt lgkmcnt({min(10, 2*(15-s))})")
        g(f"v_mfma_f32_16x16x32_bf16 v[100:103], v[{b}:{b+3}], v[44:47], v[100:103]")
        if s + 6 < 16: cload(s + 6)
    g("v_lshrrev_b32 v5, 4, v1")
    g("v_lshlrev_b32 v5, 4, v5")
    g("s_lshl_b32 s46, s45, 6")
    g(f"s_add_u32 s46, s46, {CS_L}")
    g("v_add_u32 v5, s46, v5")
    g("ds_write_b128 v5, v[100:103]")
    g("s_add_u32 s45, s45, 1")
    g("s_cmp_eq_u32 s45, 3")
    g("s_cbranch_scc1 A_CS")
    g("s_waitcnt vmcnt(0)")
    rl_finish(g)
    g("s_waitcnt lgkmcnt(0)")
    g("s_barrier")
    g("s_cmp_lg_u32 s3, 4")
    g("s_cbranch_scc1 A_B4")
    srd(g, 24, 18, 256)
    if KVDBG: ST(4)
    if GO:
        g("s_lshl_b32 s45, s68, 7"); g(f"s_add_u32 s45, s45, {FL + 96}")
        g("v_mov_b32 v9, 0"); g("s_mov_b32 s69, 0")
        g("s_mov_b64 exec, 1")
        g("A_PK:")
        g(f"buffer_load_dword v8, v9, s[36:39], s45 offen {PSC}")
        g("s_add_u32 s69, s69, 1")
        g("s_waitcnt vmcnt(0)")
        if PSL: g(f"s_sleep {PSL}")
        g("v_cmp_eq_u32 vcc, 1, v8")
        g("s_cbranch_vccnz A_PK_D")
        g(f"s_cmp_lt_u32 s69, {SPIN}")
        g("s_cbranch_scc1 A_PK")
        g("A_PK_D:")
        g("s_mov_b64 exec, -1")
        if not DIRECT:
            g("s_cmp_lg_u32 s41, 0")
            g("s_cbranch_scc1 A_PG")
            g("v_lshlrev_b32 v8, 7, v1"); g("v_mov_b32 v9, 1")
            g("s_mov_b64 exec, 0xfe")
            g("buffer_store_dword v9, v8, s[36:39], s45 offen sc1")
            g("s_mov_b64 exec, -1")
            g("A_PG:")
    elif GO2:
        g("s_cmp_lg_u32 s41, 0")
        g("s_cbranch_scc1 A_PF")
        poll_bytes(g, 24, 0, "A_PK")
        g("v_lshlrev_b32 v8, 7, v1"); g("v_mov_b32 v9, 1")
        g("s_lshl_b32 s45, s40, 10"); g(f"s_add_u32 s45, s45, {FL + 96}")
        g("s_mov_b64 exec, 0xfe")
        g("buffer_store_dword v9, v8, s[36:39], s45 offen sc1")
        g("s_mov_b64 exec, -1")
        g("s_branch A_PG")
        g("A_PF:")
        g("s_lshl_b32 s45, s68, 7"); g(f"s_add_u32 s45, s45, {FL + 96}")
        g("v_mov_b32 v9, 0"); g("s_mov_b32 s69, 0")
        g("s_mov_b64 exec, 1")
        g("A_PH:")
        g("buffer_load_dword v8, v9, s[36:39], s45 offen sc1")
        g("s_add_u32 s69, s69, 1")
        g("s_waitcnt vmcnt(0)")
        g("v_cmp_eq_u32 vcc, 1, v8")
        g("s_cbranch_vccnz A_PH_D")
        g(f"s_cmp_lt_u32 s69, {SPIN}")
        g("s_cbranch_scc1 A_PH")
        g("A_PH_D:")
        g("s_mov_b64 exec, -1")
        g("A_PG:")
    else:
        poll_bytes(g, 24, 0, "A_PK")
    ST(5)
    if KVDBG: g("s_add_u32 s74, s72, s69")
    g("s_lshl_b32 s45, s40, 1")
    for p in range(NEARLY):
        g(f"s_add_u32 s46, s45, {p}")
        g("s_and_b32 s46, s46, 63")
        g("s_lshl_b32 s46, s46, 11")
        g(f"s_mov_b32 m0, {KV_L + 2048*slot_of(p)}")
        if KVF: g(f"s_add_u32 s46, s46, {KVF}")
        g("buffer_load_dwordx4 v3, s[36:39], s46 offen lds")
        g("buffer_load_dwordx4 v3, s[36:39], s46 offen offset:1024 lds")
    g("v_lshlrev_b32 v4, 2, v1")
    g(f"s_mov_b32 s46, {KMAXW}")
    g("buffer_load_dword v10, v4, s[36:39], s46 offen sc1")
    g("buffer_load_dword v11, v4, s[36:39], s46 offen offset:256 sc1")
    g("v_and_b32 v4, 7, v1"); g("v_lshlrev_b32 v4, 7, v4")
    g("s_lshl_b32 s46, s40, 10"); g(f"s_add_u32 s46, s46, {FL + 124}")
    g("buffer_load_dword v12, v4, s[36:39], s46 offen sc1")
    g("s_getreg_b32 s46, hwreg(HW_REG_XCC_ID)")
    g("s_and_b32 s46, s46, 15")
    g("s_waitcnt vmcnt(0)")
    g("v_cmp_eq_u32 vcc, s46, v12")
    g("s_cmp_eq_u64 vcc, -1")
    g("s_cselect_b32 s46, 1, 0")
    if FORCE_SLOW: g("s_mov_b32 s46, 0")
    g("v_max_f32 v10, v10, v11")
    wave_max16x4(g, 10, 13)
    g("v_mov_b32 v11, s46")
    g(f"v_mov_b32 v5, {KM_L}")
    g("ds_write_b64 v5, v[10:11]")
    g("s_branch A_B4")
    g("A_KV:")
    g("v_and_b32 v2, 15, v1")
    g("v_lshrrev_b32 v28, 4, v1")
    g("s_lshr_b32 s46, s41, 1")
    g("s_lshl_b32 s47, s46, 14")
    g("v_xor_b32 v4, v2, v28")
    g("v_lshlrev_b32 v4, 4, v4")
    g("v_lshl_add_u32 v4, v2, 10, v4")
    g("v_add_u32 v40, s47, v4")
    for sp in range(1, 4):
        g(f"v_xor_b32 v{40+sp}, {sp<<6}, v40")
    g("v_lshlrev_b32 v5, 8, v28")
    g("v_bfe_u32 v6, v1, 2, 2")
    g("v_lshl_add_u32 v5, v6, 5, v5")
    g("v_and_b32 v6, 3, v1")
    g("v_lshl_add_u32 v5, v6, 3, v5")
    g(f"v_add_u32 v48, {WKV_L}, v5")
    for r in range(4): g(f"v_mov_b32 v{44+r}, 0x3f803f80")
    for r in range(8): g(f"v_mov_b32 v{100+r}, 0")
    def kload(s):
        b = 52 + 8*(s % 4)
        g(f"ds_read_b64_tr_b16 v[{b}:{b+1}], v48 offset:{s*1024}")
        g(f"ds_read_b64_tr_b16 v[{b+2}:{b+3}], v48 offset:{s*1024+128}")
        g(f"ds_read_b128 v[{b+4}:{b+7}], v{40+(s&3)} offset:{(s>>2)*256}")
    g("s_lshl_b32 s47, s40, 1")
    g("s_lshr_b32 s48, s41, 2")
    g("s_add_u32 s47, s47, s48")
    g("s_lshl_b32 s47, s47, 11")
    if KVF: g(f"s_add_u32 s47, s47, {KVF}")
    g("s_and_b32 s48, s46, 1")
    g("s_and_b32 s49, s41, 1")
    g("s_cmp_eq_u32 s49, 1")
    g("s_cbranch_scc1 A_V")
    def kv_gemm(isv):
        g("s_waitcnt vmcnt(16)")
        g("s_barrier")
        ST(3)
        for s in range(4): kload(s)
        for s in range(16):
            b = 52 + 8*(s % 4)
            g(f"s_waitcnt lgkmcnt({min(9, 3*(15-s))})")
            if not isv:
                g(f"v_mfma_f32_16x16x32_bf16 v[100:103], v[{b}:{b+3}], v[{b+4}:{b+7}], v[100:103]")
                g(f"v_mfma_f32_16x16x32_bf16 v[104:107], v[{b}:{b+3}], v[44:47], v[104:107]")
            else:
                g(f"v_mfma_f32_16x16x32_bf16 v[100:103], v[{b+4}:{b+7}], v[{b}:{b+3}], v[100:103]")
                g(f"v_mfma_f32_16x16x32_bf16 v[104:107], v[44:47], v[{b}:{b+3}], v[104:107]")
            if s + 4 < 16: kload(s + 4)
        if KV2 == 1: ST(4)
        g("s_barrier")
        if KV2 == 1: ST(5)
    g("s_lshl_b32 s50, s46, 7")
    g(f"s_add_u32 s50, s50, {ST_L}")
    g("v_lshlrev_b32 v12, 3, v2")
    g("v_add_u32 v12, s50, v12")
    g("v_and_b32 v13, 1, v28")
    g("v_lshlrev_b32 v13, 9, v13")
    g("v_lshl_add_u32 v13, v2, 4, v13")
    g("v_lshrrev_b32 v6, 1, v28")
    g("v_lshl_add_u32 v13, v6, 3, v13")
    g("s_lshl_b32 s48, s48, 8")
    g("s_add_u32 s47, s47, s48")
    g("s_lshl_b32 s50, s40, 2")
    g("s_add_u32 s50, s50, s46")
    g("s_lshl_b32 s50, s50, 2")
    g(f"s_add_u32 s50, s50, {KMAXW}")
    kv_gemm(False)
    g("ds_read_b64 v[52:53], v12")
    g("s_waitcnt lgkmcnt(0)")
    for r in range(4): g(f"v_mul_f32 v{104+r}, v53, v{104+r}")
    for r in range(4): g(f"v_fma_f32 v{100+r}, v52, v{100+r}, v{104+r}")
    g("v_cvt_pk_bf16_f32 v80, v100, v101")
    g("v_cvt_pk_bf16_f32 v81, v102, v103")
    g("buffer_store_dwordx2 v[80:81], v13, s[36:39], s47 offen sc1")
    g("v_mul_f32 v54, v100, v100")
    for r in range(1, 4): g(f"v_fmac_f32 v54, v{100+r}, v{100+r}")
    g("v_mov_b32 v56, v54")
    g("v_permlane16_swap_b32 v54, v56")
    g("v_add_f32 v54, v54, v56")
    g("v_mov_b32 v56, v54")
    g("v_permlane32_swap_b32 v54, v56")
    g("v_add_f32 v54, v54, v56")
    wave_max16x4(g, 54, 56)
    g("v_mov_b32 v5, 0")
    g("s_mov_b64 exec, 1")
    g("buffer_store_dword v54, v5, s[36:39], s50 offen sc1")
    g("s_mov_b64 exec, -1")
    g("s_branch A_KVF")
    g("A_V:")
    g("s_lshl_b32 s50, s46, 7")
    g(f"s_add_u32 s50, s50, {ST_L}")
    g("v_lshlrev_b32 v12, 5, v28")
    g("v_add_u32 v12, s50, v12")
    g("v_and_b32 v13, 1, v28")
    g("v_lshlrev_b32 v13, 8, v13")
    g("v_lshl_add_u32 v13, v2, 4, v13")
    g("v_lshrrev_b32 v6, 1, v28")
    g("v_lshl_add_u32 v13, v6, 3, v13")
    g("s_lshl_b32 s48, s48, 9")
    g("s_add_u32 s47, s47, s48")
    kv_gemm(True)
    g("ds_read_b128 v[52:55], v12")
    g("ds_read_b128 v[56:59], v12 offset:16")
    g("s_waitcnt lgkmcnt(0)")
    for r in range(4): g(f"v_mul_f32 v{104+r}, v{53+2*r}, v{104+r}")
    for r in range(4): g(f"v_fma_f32 v{100+r}, v{52+2*r}, v{100+r}, v{104+r}")
    g("v_cvt_pk_bf16_f32 v80, v100, v101")
    g("v_cvt_pk_bf16_f32 v81, v102, v103")
    g("buffer_store_dwordx2 v[80:81], v13, s[36:39], s47 offen offset:1024 sc1")
    g("A_KVF:")
    if KV2 == 2: ST(2)
    if KVDBG: ST(2)
    xres(g)
    if KV2 == 2: ST(4)
    g("s_waitcnt vmcnt(0)")
    if KVDBG: ST(4)
    srd(g, 24, 18, 256)
    if GO:
        g("s_and_b32 s46, s68, 3"); g("s_lshl_b32 s46, s46, 6")
        if NC1: g("s_mov_b32 s46, 0")
        g("v_mov_b32 v8, 0"); g("v_mov_b32 v9, 1")
        g("s_mov_b64 exec, 1")
        g("buffer_atomic_add v9, v8, s[24:27], s46 offen sc0 sc1")
        g("s_mov_b64 exec, -1")
        if KV2 != 1: ST(5)
        stats(g)
        g("s_waitcnt lgkmcnt(0)")
        g("s_barrier")
        g("v_mov_b32 v8, 0")
        g("v_mov_b32 v11, 1")
        g("s_waitcnt vmcnt(0)")
        if KVDBG: ST(4)
        g("v_readfirstlane_b32 s46, v9")
        g(f"s_cmp_lg_u32 s46, {255 if NC1 else 63}")
        g("s_cbranch_scc1 A_KVG")
        g("v_mov_b32 v9, 1")
        g("s_mov_b64 exec, 1")
        g("buffer_atomic_add v9, v8, s[24:27], 0 offen offset:16 sc0 sc1")
        g("s_waitcnt vmcnt(0)")
        if KVDBG: ST(2)
        g("v_readfirstlane_b32 s46, v9")
        g("s_add_u32 s46, s46, 1")
        g("s_mov_b32 s69, 0")
        g("A_KL:")
        g("s_cmp_eq_u32 s46, 4")
        g("s_cbranch_scc1 A_KB")
        g("v_mov_b32 v9, 0")
        g("buffer_atomic_add v9, v8, s[24:27], 0 offen offset:16 sc0 sc1")
        g("s_add_u32 s69, s69, 1")
        g("s_waitcnt vmcnt(0)")
        g("v_readfirstlane_b32 s46, v9")
        g(f"s_cmp_lt_u32 s69, {SPIN}")
        g("s_cbranch_scc1 A_KL")
        g("A_KB:")
        g("s_mov_b64 exec, -1")
        g("v_lshlrev_b32 v10, 7, v1")
        g("s_and_b32 s46, s68, 3"); g("s_lshl_b32 s46, s46, 13")
        g(f"s_add_u32 s46, s46, {FL + 96}")
        g("buffer_store_dword v11, v10, s[36:39], s46 offen sc1")
        g("A_KVG:")
        rl_finish(g)
        g("s_barrier")
    else:
        cnt4_add(g, 24, 0, ret=KVDBG)
        ST(5)
        rl_finish(g)
        g("s_barrier")
    g("A_B4:")
    srd(g, 24, 18, 256)
    g("s_waitcnt lgkmcnt(0)")
    g("s_barrier")
    rl_finish(g, True)
```

```python
from common import *
X_L = 0; WQ_L = 65536; WKV_L = 131072; ST_L = 147456; CS_L = ST_L + 512; KM_L = CS_L + 256; QM_L = KM_L + 16
QX_L = 0
KV_L = 32768
NEARLY = 7
def slot_of(p): return (p + 57) & 63
KVF = 0x0; KMAXW = 0x21000; FL = 0x22000; FW = 0x2A000
OF = 0x100000; STW = 0xA00000
XR = 16; QR = 24
SPIN = 40000
import os
FORCE_SLOW = os.environ.get("SLOW") == "1"

def cnt4_addr(g, vt):
    g(f"v_and_b32 v{vt+1}, 3, v1")
    g(f"v_lshlrev_b32 v{vt+1}, 6, v{vt+1}")
GO = os.environ.get("GO", "1") == "1"
NC1 = os.environ.get("NC1") == "1"
DIRECT = os.environ.get("DIRECT", "1") == "1"
PSC = os.environ.get("PSC", "sc1")
SSC = os.environ.get("SSC", "sc1")
PSL = int(os.environ.get("PSL", "0"))
KV2 = int(os.environ.get("KV2", "0"))
GLATE = os.environ.get("GLATE", "1") == "1"
WQLATE = os.environ.get("WQLATE", "0") == "1"
GO2 = os.environ.get("GO", "1") == "2"
KVDBG = os.environ.get("KVDBG") == "1"
def cnt4_add(g, srd, off, ret=False):
    g("s_and_b32 s46, s68, 3"); g("s_lshl_b32 s46, s46, 6")
    g("v_mov_b32 v8, 0"); g("v_mov_b32 v9, 1")
    g("s_mov_b64 exec, 1")
    g(f"buffer_atomic_add v9, v8, s[{srd}:{srd+3}], s46 offen offset:{off} {'sc0 ' if ret else ''}sc1")
    if ret: g("s_waitcnt vmcnt(0)")
    g("s_mov_b64 exec, -1")
P4 = os.environ.get("P4", "1") == "1"
def poll_bytes(g, srd, off, lab, vt=8, sct="s69"):
    g(f"s_mov_b32 {sct}, 0")
    cnt4_addr(g, vt)
    if P4: g("s_mov_b64 exec, 15")
    g(f"{lab}:")
    g(f"buffer_load_dword v{vt}, v{vt+1}, s[{srd}:{srd+3}], 0 offen offset:{off} sc1")
    g(f"s_add_u32 {sct}, {sct}, 1")
    g("s_waitcnt vmcnt(0)")
    g(f"v_cmp_eq_u32 vcc, 64, v{vt}")
    g(f"s_cmp_eq_u64 vcc, {15 if P4 else -1}")
    g(f"s_cbranch_scc1 {lab}_D")
    g(f"s_cmp_lt_u32 {sct}, {SPIN}")
    g(f"s_cbranch_scc1 {lab}")
    g(f"{lab}_D:")
    if P4: g("s_mov_b64 exec, -1")

RLLATE = os.environ.get("RLLATE", "0") == "1"
def rl_finish(g, late=False):
    if late != RLLATE: return
    if late: g("s_waitcnt vmcnt(0)")
    g("s_mov_b32 s58, 0x05040100")
    g("s_mov_b32 s59, 0x07060302")
    for d in range(4):
        g(f"v_perm_b32 v{40+d}, v{33+2*d}, v{32+2*d}, s58")
        g(f"v_perm_b32 v{44+d}, v{33+2*d}, v{32+2*d}, s59")
    g("buffer_store_dwordx4 v[40:43], v3, s[36:39], s56 offen sc1")
    g("buffer_store_dwordx4 v[44:47], v3, s[36:39], s57 offen sc1")

def stats(g):
    g("v_lshrrev_b32 v2, 3, v1")
    g("v_and_b32 v14, 7, v1")
    g("v_and_b32 v4, 1, v2")
    g("v_lshlrev_b32 v5, 10, v2")
    g("v_lshl_add_u32 v5, v14, 4, v5")
    g("s_lshl_b32 s45, s60, 13")
    g("v_add_u32 v5, s45, v5")
    g("v_lshlrev_b32 v4, 7, v4")
    g("v_add_u32 v6, v5, v4")
    g("v_xor_b32 v4, 128, v4")
    g("v_add_u32 v7, v5, v4")
    for i in range(8):
        a = 6 if i % 2 == 0 else 7
        g(f"ds_read_b128 v[{52+4*i}:{55+4*i}], v{a} offset:{(i & ~1)*128}")
    g("v_mov_b32 v8, 0x3f803f80")
    for r in range(84, 92): g(f"v_mov_b32 v{r}, 0")
    for i in range(8):
        g(f"s_waitcnt lgkmcnt({7-i})")
        for d in range(4):
            r = 52 + 4*i + d
            g(f"v_dot2c_f32_bf16 v{84+d}, v{r}, v8")
            g(f"v_dot2c_f32_bf16 v{88+d}, v{r}, v{r}")
    g("v_add_f32 v84, v84, v85"); g("v_add_f32 v86, v86, v87")
    g("v_add_f32 v88, v88, v89"); g("v_add_f32 v90, v90, v91")
    g("v_add_f32 v84, v84, v86"); g("v_add_f32 v88, v88, v90")
    for m in ("quad_perm:[1,0,3,2]", "quad_perm:[2,3,0,1]", "row_half_mirror"):
        g(f"v_add_f32_dpp v84, v84, v84 {m} row_mask:0xf bank_mask:0xf")
        g(f"v_add_f32_dpp v88, v88, v88 {m} row_mask:0xf bank_mask:0xf")
    g(f"v_mul_f32 v84, {f32(1/512)}, v84")
    g(f"v_mul_f32 v88, {f32(1/512)}, v88")
    g("v_fma_f32 v88, -v84, v84, v88")
    g("v_max_f32 v88, 0, v88")
    g(f"v_add_f32 v88, {f32(1e-5)}, v88")
    g("v_rsq_f32 v88, v88")
    g("v_mul_f32 v89, v84, v88")
    g("v_sub_f32 v89, 0, v89")
    g("v_lshlrev_b32 v5, 3, v2")
    g("s_lshl_b32 s45, s60, 6")
    g(f"s_add_u32 s45, s45, {ST_L}")
    g("v_add_u32 v5, s45, v5")
    g("ds_write_b64 v5, v[88:89]")

def xres(g):
    g("v_and_b32 v2, 31, v1")
    g("v_lshrrev_b32 v28, 5, v1")
    g("s_lshr_b32 s45, s3, 2")
    g("s_lshl_b32 s45, s45, 2")
    g("s_lshl_b32 s61, s41, 3")
    g("s_add_u32 s45, s45, s61")
    g("v_add_u32 v4, s45, v28")
    g("v_and_b32 v5, 15, v2")
    g("v_xor_b32 v4, v4, v5")
    g("v_lshlrev_b32 v4, 4, v4")
    g("v_lshl_add_u32 v4, v2, 10, v4")
    g("s_bfe_u32 s61, s3, 0x10001")
    g("s_lshl_b32 s61, s61, 15")
    g("v_add_u32 v4, s61, v4")
    g("v_xor_b32 v5, 32, v4")
    g(f"ds_read_b128 v[{XR}:{XR+3}], v4")
    g(f"ds_read_b128 v[{XR+4}:{XR+7}], v5")

def phase_a(g, ST):
    g("s_load_dwordx4 s[4:7], s[0:1], 0")
    g("s_load_dwordx4 s[8:11], s[0:1], 16")
    g("s_load_dwordx2 s[12:13], s[0:1], 32")
    g("s_load_dwordx2 s[14:15], s[0:1], 48")
    g("s_load_dwordx4 s[64:67], s[0:1], 56")
    g("s_load_dwordx4 s[16:19], s[0:1], 72")
    g("s_load_dwordx2 s[62:63], s[0:1], 88")
    ids(g)
    g("s_and_b32 s42, s3, 1")
    g("s_lshl_b32 s43, s42, 3")
    g("v_xor_b32 v10, s43, v1")
    g("v_lshlrev_b32 v10, 4, v10")
    for i in range(1, 8):
        g(f"v_xor_b32 v{10+i}, {i<<4}, v10")
    g("v_lshrrev_b32 v18, 2, v1")
    g("v_lshlrev_b32 v18, 10, v18")
    g("v_and_b32 v19, 3, v1")
    g("v_lshlrev_b32 v19, 4, v19")
    g("v_or_b32 v18, v18, v19")
    g("v_lshlrev_b32 v3, 4, v1")
    g("s_lshl_b32 s43, s3, 13")
    g("s_lshl_b32 s44, s40, 16")
    g("s_add_u32 s44, s44, s43")
    g("s_lshl_b32 s68, s40, 3")
    g("s_add_u32 s68, s68, s41")
    g("s_waitcnt lgkmcnt(0)")
    ST(2)
    srd(g, 20, 4, 0x200000)
    srd(g, 24, 6, 0x80000)
    srd(g, 36, 62, WS_SIZE)
    g("s_cmp_lg_u32 s3, 7")
    g("s_cbranch_scc1 A_NZ")
    g("s_getreg_b32 s46, hwreg(HW_REG_XCC_ID)")
    g("s_and_b32 s46, s46, 15")
    g("v_mov_b32 v20, 0")
    g("v_mov_b32 v21, s46")
    g("v_cmp_eq_u32 vcc, 31, v1")
    g("v_cndmask_b32 v20, v20, v21, vcc")
    g("v_lshlrev_b32 v21, 2, v1")
    g("s_lshl_b32 s45, s68, 7")
    g(f"s_add_u32 s45, s45, {FL}")
    g("s_mov_b64 exec, 0xffffffff")
    g("buffer_store_dword v20, v21, s[36:39], s45 offen sc1")
    g("s_mov_b64 exec, -1")
    g("A_NZ:")
    g("s_mov_b32 m0, s43")
    for i in range(4):
        g(f"buffer_load_dwordx4 v{10+i}, s[20:23], s44 offen offset:{i*1024} lds")
    g("s_add_u32 s45, s43, 4096")
    g("s_mov_b32 m0, s45")
    g("s_add_u32 s44, s44, 4096")
    for i in range(4):
        g(f"buffer_load_dwordx4 v{14+i}, s[20:23], s44 offen offset:{i*1024} lds")
    g("s_and_b32 s45, s41, 1")
    g("s_cmp_eq_u32 s45, 0")
    g("s_cselect_b32 s28, s8, s10")
    g("s_cselect_b32 s29, s9, s11")
    g("s_mov_b32 s30, 0x4000")
    g("s_mov_b32 s31, 0x00020000")
    g("s_lshl_b32 s45, s3, 11")
    g(f"s_add_u32 s46, s45, {WKV_L}")
    g("s_mov_b32 m0, s46")
    g("s_nop 0")
    g("buffer_load_dwordx4 v3, s[28:31], s45 offen lds")
    g("buffer_load_dwordx4 v3, s[28:31], s45 offen offset:1024 lds")
    if not WQLATE:
        g("s_lshr_b32 s45, s3, 1")
        g("s_lshl_b32 s46, s45, 13")
        g("s_lshl_b32 s47, s42, 15")
        g("s_add_u32 s46, s46, s47")
        g(f"s_add_u32 s46, s46, {WQ_L}")
        g("s_lshl_b32 s47, s45, 17")
        g("s_lshl_b32 s48, s41, 7")
        g("s_add_u32 s47, s47, s48")
        g("s_lshl_b32 s48, s42, 6")
        g("s_add_u32 s47, s47, s48")
        for i in range(8):
            g("s_mov_b32 m0, s46")
            if i < 7: g("s_add_u32 s46, s46, 1024")
            else: g("s_nop 0")
            g("buffer_load_dwordx4 v18, s[24:27], s47 offen lds")
            if i < 7: g("s_add_u32 s47, s47, 16384")
    g("s_lshl_b32 s45, s2, 3")
    g("s_add_u32 s45, s45, s3")
    g("v_and_b32 v20, 31, v1")
    g("v_lshlrev_b32 v20, 2, v20")
    g("v_lshrrev_b32 v21, 5, v1")
    g("s_cmp_ge_u32 s45, 1792")
    g("s_cbranch_scc1 A_WO")
    g("s_cmp_ge_u32 s45, 896")
    g("s_cbranch_scc1 A_W2")
    srd(g, 32, 14, 512*1792*2)
    g("s_lshr_b32 s46, s45, 5")
    g("s_and_b32 s47, s45, 31")
    g("s_lshr_b32 s48, s47, 2")
    g("s_lshl_b32 s48, s48, 6")
    g("s_and_b32 s49, s47, 1")
    g("s_lshl_b32 s49, s49, 5")
    g("s_add_u32 s48, s48, s49")
    g("s_bfe_u32 s49, s47, 0x10001")
    g("s_add_u32 s48, s48, s49")
    g("s_mul_i32 s48, s48, 3584")
    g("s_lshl_b32 s49, s46, 7")
    g("s_add_u32 s48, s48, s49")
    for jj in range(1, 8):
        g(f"s_add_u32 s{48+jj}, s48, {(16*(jj>>2) + 2*(jj&3))*3584}")
    g(f"s_mov_b32 s58, {8*3584}")
    g("v_mul_lo_u32 v21, v21, s58")
    g("v_add_u32 v20, v20, v21")
    g("s_lshl_b32 s56, s46, 16")
    g("s_lshl_b32 s57, s47, 10")
    g("s_add_u32 s56, s56, s57")
    g(f"s_add_u32 s56, s56, {W1F}")
    g(f"s_add_u32 s57, s56, {32*1024}")
    g("s_branch A_GO")
    g("A_W2:")
    srd(g, 32, 66, 1792*512*2)
    g("s_sub_u32 s45, s45, 896")
    g("s_lshr_b32 s46, s45, 3")
    g("s_and_b32 s47, s45, 7")
    g("s_lshr_b32 s48, s46, 2")
    g("s_lshl_b32 s48, s48, 6")
    g("s_and_b32 s49, s46, 1")
    g("s_lshl_b32 s49, s49, 5")
    g("s_add_u32 s48, s48, s49")
    g("s_lshr_b32 s49, s46, 1")
    g("s_and_b32 s49, s49, 1")
    g("s_add_u32 s48, s48, s49")
    g("s_lshl_b32 s48, s48, 10")
    g("s_lshl_b32 s49, s47, 7")
    g("s_add_u32 s48, s48, s49")
    for jj in range(1, 8):
        g(f"s_add_u32 s{48+jj}, s48, {(16*(jj>>2) + 2*(jj&3))*1024}")
    g("v_lshlrev_b32 v21, 13, v21")
    g("v_add_u32 v20, v20, v21")
    g("s_mul_i32 s56, s47, 112")
    g("s_add_u32 s56, s56, s46")
    g("s_lshl_b32 s56, s56, 11")
    g(f"s_add_u32 s56, s56, {W2F}")
    g("s_add_u32 s57, s56, 1024")
    g("s_branch A_GO")
    g("A_WO:")
    srd(g, 32, 12, 0x80000)
    g("s_sub_u32 s45, s45, 1792")
    g("s_lshr_b32 s46, s45, 5")
    g("s_and_b32 s47, s45, 31")
    g("s_lshl_b32 s48, s47, 14")
    g("s_lshl_b32 s49, s46, 7")
    g("s_add_u32 s48, s48, s49")
    for jj in range(1, 8):
        g(f"s_add_u32 s{48+jj}, s48, {(8*(jj>>2) + (jj&3))*1024}")
    g("v_lshlrev_b32 v21, 12, v21")
    g("v_add_u32 v20, v20, v21")
    g("s_lshl_b32 s56, s46, 16")
    g("s_lshl_b32 s57, s47, 10")
    g("s_add_u32 s56, s56, s57")
    g(f"s_add_u32 s56, s56, {WOF}")
    g("s_add_u32 s57, s56, 32768")
    g("A_GO:")
    def gathers():
        for jj in range(8):
            g(f"buffer_load_dword v{32+jj}, v20, s[32:35], s{48+jj} offen")
    def wq_dma():
        g("s_lshr_b32 s45, s3, 1")
        g("s_lshl_b32 s46, s45, 13")
        g("s_lshl_b32 s47, s42, 15")
        g("s_add_u32 s46, s46, s47")
        g(f"s_add_u32 s46, s46, {WQ_L}")
        g("s_lshl_b32 s47, s45, 17")
        g("s_lshl_b32 s61, s41, 7")
        g("s_add_u32 s47, s47, s61")
        g("s_lshl_b32 s61, s42, 6")
        g("s_add_u32 s47, s47, s61")
        for i in range(8):
            g("s_mov_b32 m0, s46")
            if i < 7: g("s_add_u32 s46, s46, 1024")
            else: g("s_nop 0")
            g("buffer_load_dwordx4 v18, s[24:27], s47 offen lds")
            if i < 7: g("s_add_u32 s47, s47, 16384")
    if not GLATE: gathers()
    g("s_and_b32 s60, s41, 6")
    g("s_add_u32 s60, s60, s3")
    g("s_add_u32 s60, s60, 3")
    g("s_and_b32 s60, s60, 7")
    g("s_cmp_eq_u32 s3, 7")
    g("s_cbranch_scc1 A_KV")
    nlate = (8 if GLATE else 0) + (8 if WQLATE else 0)
    g(f"s_waitcnt vmcnt({16 - nlate})")
    g("s_barrier")
    ST(3)
    g("s_cmp_ge_u32 s3, 5")
    g("s_cbranch_scc1 A_ST2")
    if WQLATE: wq_dma()
    if GLATE: gathers()
    g("s_barrier")
    stats(g)
    g("s_branch A_ST3")
    g("A_ST2:")
    stats(g)
    g("s_waitcnt lgkmcnt(0)")
    g("s_barrier")
    if WQLATE: wq_dma()
    if GLATE: gathers()
    g("A_ST3:")
    xres(g)
    g("s_waitcnt lgkmcnt(0)")
    g("s_waitcnt vmcnt(8)")
    g("s_barrier")
    ST(4)
    g("s_cmp_ge_u32 s3, 4")
    g("s_cbranch_scc1 A_AUX")
    g("v_and_b32 v4, 15, v2")
    g("v_xor_b32 v4, v4, v28")
    g("v_lshlrev_b32 v4, 4, v4")
    g("s_lshr_b32 s45, s3, 1")
    g("s_lshl_b32 s46, s45, 15")
    g("v_lshl_add_u32 v4, v2, 10, v4")
    g("v_add_u32 v40, s46, v4")
    for sp in range(1, 8):
        g(f"v_xor_b32 v{40+sp}, {sp<<5}, v40")
    g("v_lshrrev_b32 v5, 5, v1")
    g("v_lshlrev_b32 v5, 9, v5")
    g("v_bfe_u32 v6, v1, 2, 2")
    g("v_lshl_add_u32 v5, v6, 6, v5")
    g("v_bfe_u32 v6, v1, 4, 1")
    g("v_lshl_add_u32 v5, v6, 5, v5")
    g("v_and_b32 v6, 3, v1")
    g("v_lshl_add_u32 v5, v6, 3, v5")
    g("s_lshl_b32 s46, s42, 15")
    g(f"s_add_u32 s46, s46, {WQ_L}")
    g("v_add_u32 v48, s46, v5")
    for r in range(16): g(f"v_mov_b32 v{100+r}, 0")
    def qload(s):
        b = 52 + 8*(s % 4)
        g(f"ds_read_b64_tr_b16 v[{b}:{b+1}], v48 offset:{s*1024}")
        g(f"ds_read_b64_tr_b16 v[{b+2}:{b+3}], v48 offset:{s*1024+256}")
        g(f"ds_read_b128 v[{b+4}:{b+7}], v{40+(s&7)} offset:{(s>>3)*256}")
    for s in range(4): qload(s)
    for s in range(32):
        b = 52 + 8*(s % 4)
        g(f"s_waitcnt lgkmcnt({min(9, 3*(31-s))})")
        g(f"v_mfma_f32_32x32x16_bf16 v[100:115], v[{b}:{b+3}], v[{b+4}:{b+7}], v[100:115]")
        if s + 4 < 32: qload(s + 4)
    ST(5)
    g("s_barrier")
    pass
    g("s_lshl_b32 s46, s45, 8")
    g(f"s_add_u32 s46, s46, {ST_L}")
    g("v_lshlrev_b32 v5, 3, v2")
    g("v_add_u32 v5, s46, v5")
    g("ds_read_b64 v[52:53], v5")
    g("s_lshl_b32 s46, s42, 7")
    g(f"s_add_u32 s46, s46, {CS_L}")
    g("v_lshlrev_b32 v5, 4, v28")
    g("v_add_u32 v5, s46, v5")
    for gp in range(4):
        g(f"ds_read_b128 v[{56+4*gp}:{59+4*gp}], v5 offset:{gp*32}")
    g(f"s_mov_b32 s46, {f32(0.25*LOG2E)}")
    g("s_waitcnt lgkmcnt(0)")
    g("v_mul_f32 v52, s46, v52")
    g("v_mul_f32 v53, s46, v53")
    for r in range(16):
        g(f"v_mul_f32 v{56+r}, v53, v{56+r}")
    for r in range(16):
        g(f"v_fma_f32 v{100+r}, v52, v{100+r}, v{56+r}")
    for r in range(4):
        g(f"v_cvt_pk_bf16_f32 v{80+r}, v{108+2*r}, v{109+2*r}")
    g("s_lshl_b32 s46, s3, 10")
    g(f"v_add_u32 v5, s46, v3")
    g(f"ds_write_b128 v5, v[80:83] offset:{QX_L}")
    for r in range(4):
        g(f"v_cvt_pk_bf16_f32 v{QR+r}, v{100+2*r}, v{101+2*r}")
    g("v_mul_f32 v54, v100, v100")
    g("v_mul_f32 v55, v108, v108")
    for r in range(1, 8):
        g(f"v_fmac_f32 v54, v{100+r}, v{100+r}")
        g(f"v_fmac_f32 v55, v{108+r}, v{108+r}")
    g("v_mov_b32 v56, v54"); g("v_mov_b32 v57, v55")
    g("v_permlane32_swap_b32 v54, v56")
    g("v_permlane32_swap_b32 v55, v57")
    g("v_add_f32 v54, v54, v56"); g("v_add_f32 v55, v55, v57")
    g("v_max_f32 v54, v54, v55")
    wave_max16x4(g, 54, 56)
    g("s_lshl_b32 s46, s3, 2")
    g(f"s_add_u32 s46, s46, {QM_L}")
    g("v_mov_b32 v5, s46")
    g("ds_write_b32 v5, v54")
    g("s_waitcnt vmcnt(0)")
    rl_finish(g)
    g("s_branch A_B4")
    g("A_AUX:")
    g("s_sub_u32 s45, s3, 4")
    for r in range(4):
        g(f"v_mov_b32 v{44+r}, 0x3f803f80")
    g("A_CS:")
    g("v_lshrrev_b32 v5, 4, v1")
    g("v_lshlrev_b32 v5, 9, v5")
    g("v_bfe_u32 v6, v1, 2, 2")
    g("v_lshl_add_u32 v5, v6, 6, v5")
    g("v_and_b32 v6, 3, v1")
    g("v_lshl_add_u32 v5, v6, 3, v5")
    g("s_lshr_b32 s46, s45, 1")
    g("s_lshl_b32 s46, s46, 15")
    g("s_and_b32 s47, s45, 1")
    g("s_lshl_b32 s47, s47, 5")
    g("s_add_u32 s46, s46, s47")
    g(f"s_add_u32 s46, s46, {WQ_L}")
    g("v_add_u32 v48, s46, v5")
    for r in range(4): g(f"v_mov_b32 v{100+r}, 0")
    def cload(s):
        b = 52 + 4*(s % 6)
        g(f"ds_read_b64_tr_b16 v[{b}:{b+1}], v48 offset:{s*2048}")
        g(f"ds_read_b64_tr_b16 v[{b+2}:{b+3}], v48 offset:{s*2048+256}")
    for s in range(6): cload(s)
    for s in range(16):
        b = 52 + 4*(s % 6)
        g(f"s_waitcnt lgkmcnt({min(10, 2*(15-s))})")
        g(f"v_mfma_f32_16x16x32_bf16 v[100:103], v[{b}:{b+3}], v[44:47], v[100:103]")
        if s + 6 < 16: cload(s + 6)
    g("v_lshrrev_b32 v5, 4, v1")
    g("v_lshlrev_b32 v5, 4, v5")
    g("s_lshl_b32 s46, s45, 6")
    g(f"s_add_u32 s46, s46, {CS_L}")
    g("v_add_u32 v5, s46, v5")
    g("ds_write_b128 v5, v[100:103]")
    g("s_add_u32 s45, s45, 1")
    g("s_cmp_eq_u32 s45, 3")
    g("s_cbranch_scc1 A_CS")
    g("s_waitcnt lgkmcnt(0)")
    g("s_barrier")
    g("s_waitcnt vmcnt(0)")
    rl_finish(g)
    g("s_cmp_lg_u32 s3, 4")
    g("s_cbranch_scc1 A_B4")
    srd(g, 24, 18, 256)
    if KVDBG: ST(4)
    if GO:
        g("s_lshl_b32 s45, s68, 7"); g(f"s_add_u32 s45, s45, {FL + 96}")
        g("v_mov_b32 v9, 0"); g("s_mov_b32 s69, 0")
        g("s_mov_b64 exec, 1")
        g("A_PK:")
        g(f"buffer_load_dword v8, v9, s[36:39], s45 offen {PSC}")
        g("s_add_u32 s69, s69, 1")
        g("s_waitcnt vmcnt(0)")
        if PSL: g(f"s_sleep {PSL}")
        g("v_cmp_eq_u32 vcc, 1, v8")
        g("s_cbranch_vccnz A_PK_D")
        g(f"s_cmp_lt_u32 s69, {SPIN}")
        g("s_cbranch_scc1 A_PK")
        g("A_PK_D:")
        g("s_mov_b64 exec, -1")
        if not DIRECT:
            g("s_cmp_lg_u32 s41, 0")
            g("s_cbranch_scc1 A_PG")
            g("v_lshlrev_b32 v8, 7, v1"); g("v_mov_b32 v9, 1")
            g("s_mov_b64 exec, 0xfe")
            g("buffer_store_dword v9, v8, s[36:39], s45 offen sc1")
            g("s_mov_b64 exec, -1")
            g("A_PG:")
    elif GO2:
        g("s_cmp_lg_u32 s41, 0")
        g("s_cbranch_scc1 A_PF")
        poll_bytes(g, 24, 0, "A_PK")
        g("v_lshlrev_b32 v8, 7, v1"); g("v_mov_b32 v9, 1")
        g("s_lshl_b32 s45, s40, 10"); g(f"s_add_u32 s45, s45, {FL + 96}")
        g("s_mov_b64 exec, 0xfe")
        g("buffer_store_dword v9, v8, s[36:39], s45 offen sc1")
        g("s_mov_b64 exec, -1")
        g("s_branch A_PG")
        g("A_PF:")
        g("s_lshl_b32 s45, s68, 7"); g(f"s_add_u32 s45, s45, {FL + 96}")
        g("v_mov_b32 v9, 0"); g("s_mov_b32 s69, 0")
        g("s_mov_b64 exec, 1")
        g("A_PH:")
        g("buffer_load_dword v8, v9, s[36:39], s45 offen sc1")
        g("s_add_u32 s69, s69, 1")
        g("s_waitcnt vmcnt(0)")
        g("v_cmp_eq_u32 vcc, 1, v8")
        g("s_cbranch_vccnz A_PH_D")
        g(f"s_cmp_lt_u32 s69, {SPIN}")
        g("s_cbranch_scc1 A_PH")
        g("A_PH_D:")
        g("s_mov_b64 exec, -1")
        g("A_PG:")
    else:
        poll_bytes(g, 24, 0, "A_PK")
    ST(5)
    if KVDBG: g("s_add_u32 s74, s72, s69")
    g("s_lshl_b32 s45, s40, 1")
    for p in range(NEARLY):
        g(f"s_add_u32 s46, s45, {p}")
        g("s_and_b32 s46, s46, 63")
        g("s_lshl_b32 s46, s46, 11")
        g(f"s_mov_b32 m0, {KV_L + 2048*slot_of(p)}")
        if KVF: g(f"s_add_u32 s46, s46, {KVF}")
        g("buffer_load_dwordx4 v3, s[36:39], s46 offen lds")
        g("buffer_load_dwordx4 v3, s[36:39], s46 offen offset:1024 lds")
    g("v_lshlrev_b32 v4, 2, v1")
    g(f"s_mov_b32 s46, {KMAXW}")
    g("buffer_load_dword v10, v4, s[36:39], s46 offen sc1")
    g("buffer_load_dword v11, v4, s[36:39], s46 offen offset:256 sc1")
    g("v_and_b32 v4, 7, v1"); g("v_lshlrev_b32 v4, 7, v4")
    g("s_lshl_b32 s46, s40, 10"); g(f"s_add_u32 s46, s46, {FL + 124}")
    g("buffer_load_dword v12, v4, s[36:39], s46 offen sc1")
    g("s_getreg_b32 s46, hwreg(HW_REG_XCC_ID)")
    g("s_and_b32 s46, s46, 15")
    g("s_waitcnt vmcnt(0)")
    g("v_cmp_eq_u32 vcc, s46, v12")
    g("s_cmp_eq_u64 vcc, -1")
    g("s_cselect_b32 s46, 1, 0")
    if FORCE_SLOW: g("s_mov_b32 s46, 0")
    g("v_max_f32 v10, v10, v11")
    wave_max16x4(g, 10, 13)
    g("v_mov_b32 v11, s46")
    g(f"v_mov_b32 v5, {KM_L}")
    g("ds_write_b64 v5, v[10:11]")
    g("s_branch A_B4")
    g("A_KV:")
    if WQLATE: wq_dma()
    if GLATE: gathers()
    g("v_and_b32 v2, 15, v1")
    g("v_lshrrev_b32 v28, 4, v1")
    g("s_lshr_b32 s46, s41, 1")
    g("s_lshl_b32 s47, s46, 14")
    g("v_xor_b32 v4, v2, v28")
    g("v_lshlrev_b32 v4, 4, v4")
    g("v_lshl_add_u32 v4, v2, 10, v4")
    g("v_add_u32 v40, s47, v4")
    for sp in range(1, 4):
        g(f"v_xor_b32 v{40+sp}, {sp<<6}, v40")
    g("v_lshlrev_b32 v5, 8, v28")
    g("v_bfe_u32 v6, v1, 2, 2")
    g("v_lshl_add_u32 v5, v6, 5, v5")
    g("v_and_b32 v6, 3, v1")
    g("v_lshl_add_u32 v5, v6, 3, v5")
    g(f"v_add_u32 v48, {WKV_L}, v5")
    for r in range(4): g(f"v_mov_b32 v{44+r}, 0x3f803f80")
    for r in range(8): g(f"v_mov_b32 v{100+r}, 0")
    def kload(s):
        b = 52 + 8*(s % 4)
        g(f"ds_read_b64_tr_b16 v[{b}:{b+1}], v48 offset:{s*1024}")
        g(f"ds_read_b64_tr_b16 v[{b+2}:{b+3}], v48 offset:{s*1024+128}")
        g(f"ds_read_b128 v[{b+4}:{b+7}], v{40+(s&3)} offset:{(s>>2)*256}")
    g("s_lshl_b32 s47, s40, 1")
    g("s_lshr_b32 s48, s41, 2")
    g("s_add_u32 s47, s47, s48")
    g("s_lshl_b32 s47, s47, 11")
    if KVF: g(f"s_add_u32 s47, s47, {KVF}")
    g("s_and_b32 s48, s46, 1")
    g("s_and_b32 s49, s41, 1")
    g("s_cmp_eq_u32 s49, 1")
    g("s_cbranch_scc1 A_V")
    def kv_gemm(isv):
        g("s_waitcnt vmcnt(16)")
        g("s_barrier")
        ST(3)
        for s in range(4): kload(s)
        for s in range(16):
            b = 52 + 8*(s % 4)
            g(f"s_waitcnt lgkmcnt({min(9, 3*(15-s))})")
            if not isv:
                g(f"v_mfma_f32_16x16x32_bf16 v[100:103], v[{b}:{b+3}], v[{b+4}:{b+7}], v[100:103]")
                g(f"v_mfma_f32_16x16x32_bf16 v[104:107], v[{b}:{b+3}], v[44:47], v[104:107]")
            else:
                g(f"v_mfma_f32_16x16x32_bf16 v[100:103], v[{b+4}:{b+7}], v[{b}:{b+3}], v[100:103]")
                g(f"v_mfma_f32_16x16x32_bf16 v[104:107], v[44:47], v[{b}:{b+3}], v[104:107]")
            if s + 4 < 16: kload(s + 4)
        if KV2 == 1: ST(4)
        g("s_barrier")
        if KV2 == 1: ST(5)
    g("s_lshl_b32 s50, s46, 7")
    g(f"s_add_u32 s50, s50, {ST_L}")
    g("v_lshlrev_b32 v12, 3, v2")
    g("v_add_u32 v12, s50, v12")
    g("v_and_b32 v13, 1, v28")
    g("v_lshlrev_b32 v13, 9, v13")
    g("v_lshl_add_u32 v13, v2, 4, v13")
    g("v_lshrrev_b32 v6, 1, v28")
    g("v_lshl_add_u32 v13, v6, 3, v13")
    g("s_lshl_b32 s48, s48, 8")
    g("s_add_u32 s47, s47, s48")
    g("s_lshl_b32 s50, s40, 2")
    g("s_add_u32 s50, s50, s46")
    g("s_lshl_b32 s50, s50, 2")
    g(f"s_add_u32 s50, s50, {KMAXW}")
    kv_gemm(False)
    g("ds_read_b64 v[52:53], v12")
    g("s_waitcnt lgkmcnt(0)")
    for r in range(4): g(f"v_mul_f32 v{104+r}, v53, v{104+r}")
    for r in range(4): g(f"v_fma_f32 v{100+r}, v52, v{100+r}, v{104+r}")
    g("v_cvt_pk_bf16_f32 v80, v100, v101")
    g("v_cvt_pk_bf16_f32 v81, v102, v103")
    g("buffer_store_dwordx2 v[80:81], v13, s[36:39], s47 offen sc1")
    g("v_mul_f32 v54, v100, v100")
    for r in range(1, 4): g(f"v_fmac_f32 v54, v{100+r}, v{100+r}")
    g("v_mov_b32 v56, v54")
    g("v_permlane16_swap_b32 v54, v56")
    g("v_add_f32 v54, v54, v56")
    g("v_mov_b32 v56, v54")
    g("v_permlane32_swap_b32 v54, v56")
    g("v_add_f32 v54, v54, v56")
    wave_max16x4(g, 54, 56)
    g("v_mov_b32 v5, 0")
    g("s_mov_b64 exec, 1")
    g("buffer_store_dword v54, v5, s[36:39], s50 offen sc1")
    g("s_mov_b64 exec, -1")
    g("s_branch A_KVF")
    g("A_V:")
    g("s_lshl_b32 s50, s46, 7")
    g(f"s_add_u32 s50, s50, {ST_L}")
    g("v_lshlrev_b32 v12, 5, v28")
    g("v_add_u32 v12, s50, v12")
    g("v_and_b32 v13, 1, v28")
    g("v_lshlrev_b32 v13, 8, v13")
    g("v_lshl_add_u32 v13, v2, 4, v13")
    g("v_lshrrev_b32 v6, 1, v28")
    g("v_lshl_add_u32 v13, v6, 3, v13")
    g("s_lshl_b32 s48, s48, 9")
    g("s_add_u32 s47, s47, s48")
    kv_gemm(True)
    g("ds_read_b128 v[52:55], v12")
    g("ds_read_b128 v[56:59], v12 offset:16")
    g("s_waitcnt lgkmcnt(0)")
    for r in range(4): g(f"v_mul_f32 v{104+r}, v{53+2*r}, v{104+r}")
    for r in range(4): g(f"v_fma_f32 v{100+r}, v{52+2*r}, v{100+r}, v{104+r}")
    g("v_cvt_pk_bf16_f32 v80, v100, v101")
    g("v_cvt_pk_bf16_f32 v81, v102, v103")
    g("buffer_store_dwordx2 v[80:81], v13, s[36:39], s47 offen offset:1024 sc1")
    g("A_KVF:")
    if KV2 == 2: ST(2)
    if KVDBG: ST(2)
    xres(g)
    if KV2 == 2: ST(4)
    g("s_waitcnt vmcnt(0)")
    if KVDBG: ST(4)
    srd(g, 24, 18, 256)
    if GO:
        g("s_and_b32 s46, s68, 3"); g("s_lshl_b32 s46, s46, 6")
        if NC1: g("s_mov_b32 s46, 0")
        g("v_mov_b32 v8, 0"); g("v_mov_b32 v9, 1")
        g("s_mov_b64 exec, 1")
        g("buffer_atomic_add v9, v8, s[24:27], s46 offen sc0 sc1")
        g("s_mov_b64 exec, -1")
        if KV2 != 1: ST(5)
        stats(g)
        g("s_waitcnt lgkmcnt(0)")
        g("s_barrier")
        g("v_mov_b32 v8, 0")
        g("v_mov_b32 v11, 1")
        g("s_waitcnt vmcnt(0)")
        if KVDBG: ST(4)
        g("v_readfirstlane_b32 s46, v9")
        g(f"s_cmp_lg_u32 s46, {255 if NC1 else 63}")
        g("s_cbranch_scc1 A_KVG")
        g("v_mov_b32 v9, 1")
        g("s_mov_b64 exec, 1")
        g("buffer_atomic_add v9, v8, s[24:27], 0 offen offset:16 sc0 sc1")
        g("s_waitcnt vmcnt(0)")
        if KVDBG: ST(2)
        g("v_readfirstlane_b32 s46, v9")
        g("s_add_u32 s46, s46, 1")
        g("s_mov_b32 s69, 0")
        g("A_KL:")
        g("s_cmp_eq_u32 s46, 4")
        g("s_cbranch_scc1 A_KB")
        g("v_mov_b32 v9, 0")
        g("buffer_atomic_add v9, v8, s[24:27], 0 offen offset:16 sc0 sc1")
        g("s_add_u32 s69, s69, 1")
        g("s_waitcnt vmcnt(0)")
        g("v_readfirstlane_b32 s46, v9")
        g(f"s_cmp_lt_u32 s69, {SPIN}")
        g("s_cbranch_scc1 A_KL")
        g("A_KB:")
        g("s_mov_b64 exec, -1")
        g("v_lshlrev_b32 v10, 7, v1")
        g("s_and_b32 s46, s68, 3"); g("s_lshl_b32 s46, s46, 13")
        g(f"s_add_u32 s46, s46, {FL + 96}")
        g("buffer_store_dword v11, v10, s[36:39], s46 offen sc1")
        g("A_KVG:")
        rl_finish(g)
        g("s_barrier")
    else:
        cnt4_add(g, 24, 0, ret=KVDBG)
        ST(5)
        rl_finish(g)
        g("s_barrier")
    g("A_B4:")
    srd(g, 24, 18, 256)
    g("s_waitcnt vmcnt(0) lgkmcnt(0)")
    g("s_barrier")
    rl_finish(g, True)
```

```python
from common import *
from kb_a import *
KR = 28; VR = 36; SA = 52; SB = 68; OR_ = 84; WOR = 100
NW1A = 23
def w1reg(s): return 164 + 4*s if s < NW1A else 28 + 4*(s - NW1A)
EX_L = 147456; W2L = 65536; NLF = 10
CS = 68
def hstores(g, items, rb):
    L = g.lab("HS"); D = g.lab("HD")
    g("s_cmp_eq_u32 s62, 0"); g(f"s_cbranch_scc1 {L}")
    for it in items: g(it)
    for it in items:
        op, rest = it.split(" ", 1)
        n = {"buffer_store_dwordx4": 4, "buffer_store_dwordx2": 2}[op]
        a = rest.split(", ", 1)[1]
        g(f"buffer_load_dwordx{n} v[{rb}:{rb+n-1}], {a} sc1")
    g(f"s_branch {D}")
    g(f"{L}:")
    for it in items: g(it + " sc1")
    g(f"{D}:")

def poll_words(g, vaddr, soff, lab, vt=8, sct="s69"):
    g(f"s_mov_b32 {sct}, 0")
    g(f"{lab}:")
    g(f"buffer_load_dword v{vt}, v{vaddr}, s[36:39], {soff} offen sc1")
    g(f"s_add_u32 {sct}, {sct}, 1")
    g("s_waitcnt vmcnt(0)")
    g(f"v_cmp_eq_u32 vcc, 1, v{vt}")
    g("s_cmp_eq_u64 vcc, -1")
    g(f"s_cbranch_scc1 {lab}_D")
    g(f"s_cmp_lt_u32 {sct}, {SPIN}")
    g(f"s_cbranch_scc1 {lab}")
    g(f"{lab}_D:")

def set_flag(g, off):
    L = g.lab("FS"); D = g.lab("FD")
    g("s_lshl_b32 s46, s68, 7")
    g("s_lshl_b32 s47, s3, 2")
    g("s_add_u32 s46, s46, s47")
    g(f"s_add_u32 s46, s46, {FL + off}")
    g("v_mov_b32 v8, 0"); g("v_mov_b32 v9, 1")
    g("s_mov_b64 exec, 1")
    g("s_cmp_eq_u32 s62, 0"); g(f"s_cbranch_scc1 {L}")
    g("buffer_store_dword v9, v8, s[36:39], s46 offen")
    g(f"s_branch {D}")
    g(f"{L}:")
    g("buffer_store_dword v9, v8, s[36:39], s46 offen sc1")
    g(f"{D}:")
    g("s_mov_b64 exec, -1")

def kaddr(p):
    s = slot_of(p); return (4 if s < 32 else 5), 2048*(s & 31)
def kread(g, p):
    v, o = kaddr(p); r = KR + 4*(p % 2)
    g(f"ds_read_b128 v[{r}:{r+3}], v{v} offset:{o}")
def vread(g, p):
    v, o = kaddr(p); r = VR + 8*(p % 2)
    g("s_mov_b64 exec, s[54:55]")
    g(f"ds_read_b128 v[{r}:{r+3}], v{v+2} offset:{o}")
    g(f"ds_read_b128 v[{r+4}:{r+7}], v{v+2} offset:{o+512}")
    g("s_mov_b64 exec, -1")

def kv_dma(g, i):
    L = None
    if i == 7:
        L = g.lab("SKD"); g("s_cmp_lg_u32 s3, 0"); g(f"s_cbranch_scc1 {L}")
    g(f"s_add_u32 s46, s44, {8*i}")
    g("s_and_b32 s46, s46, 63")
    g("s_lshl_b32 s46, s46, 11")
    g(f"s_add_u32 s47, s45, {16384*i}")
    g("s_mov_b32 m0, s47")
    if KVF: g(f"s_add_u32 s46, s46, {KVF}")
    else: g("s_nop 0")
    g("buffer_load_dwordx4 v3, s[36:39], s46 offen lds")
    g("buffer_load_dwordx4 v3, s[36:39], s46 offen offset:1024 lds")
    if L: g(f"{L}:")

def w_loads(g):
    ops = []
    for i in range(16):
        def f(i=i):
            g(f"buffer_load_dwordx4 v[{WOR+4*i}:{WOR+4*i+3}], v3, s[36:39], s50 offen offset:{(i&3)*1024}")
            if i & 3 == 3: g("s_add_u32 s50, s50, 4096")
        ops.append(f)
    for s in range(NW1A):
        def f(s=s):
            r = w1reg(s)
            g(f"buffer_load_dwordx4 v[{r}:{r+3}], v3, s[36:39], s51 offen offset:{(s&3)*1024}")
            if s & 3 == 3: g("s_add_u32 s51, s51, 4096")
        ops.append(f)
    return ops

def fw_set(g):
    L = g.lab("SKF")
    g("s_cmp_lg_u32 s3, 0"); g(f"s_cbranch_scc1 {L}")
    cnt4_add(g, 24, 32)
    g(f"{L}:")

PT = int(os.environ.get("PT", "13"))
STG = [None]
def attn_tile(g, p, pre=None, ex=None):
    A = SA if p % 2 == 0 else SB
    B = SB if p % 2 == 0 else SA
    last = p == 63
    ex = list(ex or [])
    def X():
        if ex: ex.pop(0)()
    TT = {0: 2, 5: 3, 13: 5, 14: 7, 22: 8, 30: 9, 38: 10, 46: 11, 53: 12, 63: 13}
    if STG[0] and p in TT: STG[0].alt(TT[p])
    if pre: pre()
    if STG[0] and p in (5, 13): STG[0].alt(TT[p] + 1)
    g("s_waitcnt lgkmcnt(0)")
    if p + 2 < 64: kread(g, p + 2)
    g(f"v_exp_f32 v{A+2}, v{A+2}"); g(f"v_exp_f32 v{A+3}, v{A+3}")
    k = KR + 4*((p + 1) % 2)
    if not last:
        g(f"v_mfma_f32_32x32x16_bf16 v[{B}:{B+15}], v[{k}:{k+3}], v[{QR}:{QR+3}], 0")
    if p + 1 < 64: vread(g, p + 1)
    for r in range(4, 8): g(f"v_exp_f32 v{A+r}, v{A+r}")
    for c in range(4): g(f"v_cvt_pk_bf16_f32 v{A+c}, v{A+2*c}, v{A+2*c+1}")
    g(f"v_exp_f32 v{A+8}, v{A+8}"); g(f"v_exp_f32 v{A+9}, v{A+9}")
    v = VR + 8*(p % 2)
    cz = "0" if p == 0 else f"v[{OR_}:{OR_+15}]"
    g(f"v_mfma_f32_32x32x16_bf16 v[{OR_}:{OR_+15}], v[{v}:{v+3}], v[{A}:{A+3}], {cz}")
    X()
    for r in range(10, 16): g(f"v_exp_f32 v{A+r}, v{A+r}")
    for c in range(4, 8): g(f"v_cvt_pk_bf16_f32 v{A+c}, v{A+2*c}, v{A+2*c+1}")
    if not last:
        g(f"v_exp_f32 v{B}, v{B}"); g(f"v_exp_f32 v{B+1}, v{B+1}")
    g(f"v_mfma_f32_32x32x16_bf16 v[{OR_}:{OR_+15}], v[{v+4}:{v+7}], v[{A+4}:{A+7}], v[{OR_}:{OR_+15}]")
    while ex: X()

def attention(g, ST):
    ST(6); STG[0] = ST
    g(f"v_add_u32 v4, {KV_L}, v3")
    g("v_add_u32 v5, 0x10000, v4")
    g("v_and_b32 v6, 15, v1")
    g("v_lshlrev_b32 v6, 4, v6")
    g("v_lshrrev_b32 v7, 5, v1")
    g("v_lshl_add_u32 v6, v7, 8, v6")
    g(f"v_add_u32 v6, {KV_L + 1024}, v6")
    g("v_add_u32 v7, 0x10000, v6")
    g("s_mov_b32 s54, 0x0000ffff"); g("s_mov_b32 s55, 0x0000ffff")
    g(f"v_mov_b32 v8, {KM_L}")
    g("ds_read_b64 v[10:11], v8")
    g("ds_read_b128 v[12:15], v8 offset:16")
    L = g.lab("SKQ")
    g("s_cmp_lt_u32 s3, 4"); g(f"s_cbranch_scc1 {L}")
    g("s_sub_u32 s46, s3, 4"); g("s_lshl_b32 s46, s46, 10")
    g("v_add_u32 v9, s46, v3")
    g(f"ds_read_b128 v[{QR}:{QR+3}], v9 offset:{QX_L}")
    g(f"{L}:")
    kread(g, 0); kread(g, 1)
    for r in range(16): g(f"v_mov_b32 v{VR+r}, 0x3f803f80")
    vread(g, 0)
    g("s_lshl_b32 s44, s40, 1"); g("s_add_u32 s44, s44, s3"); g("s_add_u32 s44, s44, 7")
    g("s_lshl_b32 s45, s3, 11"); g(f"s_add_u32 s45, s45, {KV_L}")
    g("s_lshl_b32 s50, s41, 16")
    g("s_and_b32 s46, s3, 1"); g("s_lshl_b32 s46, s46, 15"); g("s_add_u32 s50, s50, s46")
    g("s_lshr_b32 s46, s3, 2"); g("s_lshl_b32 s46, s46, 14"); g("s_add_u32 s50, s50, s46")
    g(f"s_add_u32 s50, s50, {WOF}")
    g("s_min_u32 s46, s3, 6"); g("s_mul_i32 s47, s41, 7"); g("s_add_u32 s53, s46, s47")
    g("s_lshl_b32 s51, s53, 15"); g(f"s_add_u32 s51, s51, {W1F}")
    g("s_waitcnt lgkmcnt(0)")
    g("v_max_f32 v12, v12, v13"); g("v_max_f32 v14, v14, v15"); g("v_max_f32 v12, v12, v14")
    g("v_mul_f32 v12, v12, v10")
    g("v_readfirstlane_b32 s62, v11")
    g(f"v_mov_b32 v13, {f32(3900.0)}")
    g("v_cmp_le_f32 vcc, v12, v13")
    g("s_cmp_eq_u64 vcc, -1")
    g("s_cbranch_scc0 B_SLOW")
    g(f"v_mfma_f32_32x32x16_bf16 v[{SA}:{SA+15}], v[{KR}:{KR+3}], v[{QR}:{QR+3}], 0")
    g(f"v_exp_f32 v{SA}, v{SA}"); g(f"v_exp_f32 v{SA+1}, v{SA+1}")
    wl = w_loads(g)
    for p in range(64):
        pre = None; ex = []
        if p < 8: ex.append(lambda p=p: kv_dma(g, p))
        if p == 5:
            def pre():
                g("s_waitcnt vmcnt(8)"); g("s_barrier"); fw_set(g)
        if p == PT - 4:
            def f():
                L = g.lab("SKP")
                g("s_cmp_lg_u32 s3, 5"); g(f"s_cbranch_scc1 {L}")
                cnt4_addr(g, 8)
                g("buffer_load_dword v8, v9, s[24:27], 0 offen offset:32 sc1")
                g(f"{L}:")
            ex.append(f)
        if p == PT:
            def pre():
                L = g.lab("SKP")
                g("s_waitcnt vmcnt(0)")
                g("s_cmp_lg_u32 s3, 5"); g(f"s_cbranch_scc1 {L}")
                g("v_cmp_eq_u32 vcc, 64, v8")
                g("s_cmp_eq_u64 vcc, -1")
                g(f"s_cbranch_scc1 {L}")
                poll_bytes(g, 24, 32, "B_PW")
                g(f"{L}:")
                g("s_barrier")
        if p > PT and wl: ex.append(wl.pop(0))
        attn_tile(g, p, pre, ex)
    assert not wl
    g("s_branch B_OEPI")
    g("B_SLOW:")
    g("s_barrier")
    for i in range(8): kv_dma(g, i)
    g("s_waitcnt vmcnt(0)")
    g("s_barrier")
    fw_set(g)
    NM = 100
    g("v_mov_b32 v8, v4")
    g("v_mov_b32 v10, 0xff800000")
    g("s_mov_b32 s46, 0")
    g("B_S1:")
    g(f"ds_read_b128 v[{KR}:{KR+3}], v8")
    g("v_add_u32 v8, 2048, v8")
    g("s_waitcnt lgkmcnt(0)")
    g(f"v_mfma_f32_32x32x16_bf16 v[{SA}:{SA+15}], v[{KR}:{KR+3}], v[{QR}:{QR+3}], 0")
    for r in range(0, 16, 2):
        g(f"v_max3_f32 v10, v10, v{SA+r}, v{SA+r+1}")
    g("s_add_u32 s46, s46, 1"); g("s_cmp_lt_u32 s46, 64"); g("s_cbranch_scc1 B_S1")
    g("v_mov_b32 v11, v10")
    g("v_permlane32_swap_b32 v10, v11")
    g("v_max_f32 v10, v10, v11")
    for r in range(16):
        g(f"v_sub_f32 v{NM+r}, 0, v10")
        g(f"v_mov_b32 v{OR_+r}, 0")
    g("v_mov_b32 v8, v4"); g("v_mov_b32 v9, v6")
    g("s_mov_b32 s46, 0")
    g("B_S2:")
    g(f"ds_read_b128 v[{KR}:{KR+3}], v8")
    g("s_mov_b64 exec, s[54:55]")
    g(f"ds_read_b128 v[{VR}:{VR+3}], v9")
    g(f"ds_read_b128 v[{VR+4}:{VR+7}], v9 offset:512")
    g("s_mov_b64 exec, -1")
    g("v_add_u32 v8, 2048, v8"); g("v_add_u32 v9, 2048, v9")
    g("s_waitcnt lgkmcnt(0)")
    g(f"v_mfma_f32_32x32x16_bf16 v[{SA}:{SA+15}], v[{KR}:{KR+3}], v[{QR}:{QR+3}], v[{NM}:{NM+15}]")
    for r in range(16): g(f"v_exp_f32 v{SA+r}, v{SA+r}")
    for c in range(8): g(f"v_cvt_pk_bf16_f32 v{SA+c}, v{SA+2*c}, v{SA+2*c+1}")
    g(f"v_mfma_f32_32x32x16_bf16 v[{OR_}:{OR_+15}], v[{VR}:{VR+3}], v[{SA}:{SA+3}], v[{OR_}:{OR_+15}]")
    g(f"v_mfma_f32_32x32x16_bf16 v[{OR_}:{OR_+15}], v[{VR+4}:{VR+7}], v[{SA+4}:{SA+7}], v[{OR_}:{OR_+15}]")
    g("s_add_u32 s46, s46, 1"); g("s_cmp_lt_u32 s46, 64"); g("s_cbranch_scc1 B_S2")
    poll_bytes(g, 24, 32, "B_PW2")
    for f in w_loads(g): f()
    g("B_OEPI:")
    ST(7)
    g(f"v_rcp_f32 v8, v{OR_+8}")
    for r in range(8): g(f"v_mul_f32 v{OR_+r}, v{OR_+r}, v8")
    for c in range(4): g(f"v_cvt_pk_bf16_f32 v{12+c}, v{OR_+2*c}, v{OR_+2*c+1}")
    g("s_lshl_b32 s46, s41, 2")
    g("s_and_b32 s47, s3, 1"); g("s_lshl_b32 s47, s47, 1"); g("s_add_u32 s46, s46, s47")
    g("s_lshr_b32 s47, s3, 2"); g("s_add_u32 s46, s46, s47")
    g("s_lshl_b32 s46, s46, 10")
    g("s_bfe_u32 s47, s3, 0x10001"); g("s_lshl_b32 s47, s47, 15"); g("s_add_u32 s46, s46, s47")
    g("s_lshl_b32 s52, s40, 16")
    g("s_add_u32 s46, s46, s52")
    g(f"s_add_u32 s46, s46, {OF}")
    hstores(g, ["buffer_store_dwordx4 v[12:15], v3, s[36:39], s46 offen"], 84)
    for s in range(NW1A, 32):
        r = w1reg(s)
        g(f"buffer_load_dwordx4 v[{r}:{r+3}], v3, s[36:39], s51 offen offset:{(s&3)*1024}")
        if s & 3 == 3: g("s_add_u32 s51, s51, 4096")
    g(f"s_waitcnt vmcnt({32-NW1A})")
    set_flag(g, 0)
    for r in range(4): g(f"v_mov_b32 v{64+r}, 0x3f803f80")
    for s in range(32):
        r = w1reg(s)
        c = "0" if s == 0 else f"v[{CS}:{CS+15}]"
        if s == NW1A: g("s_waitcnt vmcnt(1)")
        g(f"v_mfma_f32_32x32x16_bf16 v[{CS}:{CS+15}], v[{r}:{r+3}], v[64:67], {c}")
    g("s_barrier")
    g("v_and_b32 v10, 7, v1"); g("v_lshlrev_b32 v10, 2, v10")
    g("s_lshl_b32 s48, s40, 3"); g("s_add_u32 s48, s48, s3"); g("s_lshl_b32 s48, s48, 7")
    g(f"s_add_u32 s48, s48, {FL}")
    poll_words(g, 10, "s48", "B_PO")
    ST(8)
    def dma8(base):
        g("s_lshl_b32 s46, s3, 12")
        g("s_add_u32 s47, s46, s52"); g(f"s_add_u32 s47, s47, {base}")
        g("s_mov_b32 m0, s46")
        g("s_nop 0")
        for i in range(4): g(f"buffer_load_dwordx4 v3, s[36:39], s47 offen offset:{i*1024} lds")
        g("s_add_u32 s46, s46, 32768"); g("s_add_u32 s47, s47, 32768")
        g("s_mov_b32 m0, s46")
        g("s_nop 0")
        for i in range(4): g(f"buffer_load_dwordx4 v3, s[36:39], s47 offen offset:{i*1024} lds")
    dma8(OF)
    g("s_mul_i32 s46, s41, 112"); g("s_mul_i32 s47, s3, 14"); g("s_add_u32 s46, s46, s47")
    g("s_lshl_b32 s46, s46, 11"); g(f"s_add_u32 s56, s46, {W2F}")
    g(f"s_mul_i32 s47, s3, {NLF*1024}"); g(f"s_add_u32 s47, s47, {W2L}")
    g("s_mov_b32 s46, s56")
    for i in range(NLF):
        if i % 4 == 0:
            g("s_mov_b32 m0, s47")
            g("s_add_u32 s47, s47, 4096")
        g(f"buffer_load_dwordx4 v3, s[36:39], s46 offen offset:{(i&3)*1024} lds")
        if i % 4 == 3: g("s_add_u32 s46, s46, 4096")
    g("s_bfe_u32 s46, s3, 0x10001"); g("s_lshl_b32 s46, s46, 15")
    g("s_lshr_b32 s47, s3, 2"); g("s_lshl_b32 s47, s47, 14"); g("s_add_u32 s46, s46, s47")
    g("v_add_u32 v11, s46, v3")
    g("s_and_b32 s46, s3, 1")
    g("s_cmp_eq_u32 s46, 0")
    g("s_mov_b32 s54, 0x01000c0c"); g("s_mov_b32 s57, 0x03020c0c")
    g("s_cselect_b32 s57, s54, s57")
    for r in range(8): g(f"v_perm_b32 v{XR+r}, v{XR+r}, v{XR+r}, s57")
    g(f"s_waitcnt vmcnt({NLF})")
    g("s_barrier")
    ST(9)
    RING = [64, 24, 12, 4]; AC = OR_
    def bl(i): g(f"ds_read_b128 v[{RING[i%4]}:{RING[i%4]+3}], v11 offset:{i*1024}")
    for i in range(4): bl(i)
    for i in range(16):
        b = RING[i % 4]
        g(f"s_waitcnt lgkmcnt({min(3, 15-i)})")
        c = "0" if i == 0 else f"v[{AC}:{AC+15}]"
        g(f"v_mfma_f32_32x32x16_bf16 v[{AC}:{AC+15}], v[{WOR+4*i}:{WOR+4*i+3}], v[{b}:{b+3}], {c}")
        if i + 4 < 16: bl(i + 4)
    H = 100
    g("s_lshl_b32 s46, s3, 11"); g(f"s_add_u32 s46, s46, {EX_L}")
    g("v_lshlrev_b32 v12, 5, v1")
    g("v_add_u32 v13, s46, v12")
    g("s_xor_b32 s46, s46, 8192")
    g("v_add_u32 v12, s46, v12")
    g("s_cmp_ge_u32 s3, 4"); g("s_cbranch_scc1 B_X1")
    g(f"ds_write_b128 v13, v[{AC+8}:{AC+11}]"); g(f"ds_write_b128 v13, v[{AC+12}:{AC+15}] offset:16")
    for r in range(8): g(f"v_add_f32 v{H+r}, v{AC+r}, v{XR+r}")
    g("s_branch B_X2")
    g("B_X1:")
    g(f"ds_write_b128 v13, v[{AC}:{AC+3}]"); g(f"ds_write_b128 v13, v[{AC+4}:{AC+7}] offset:16")
    for r in range(8): g(f"v_add_f32 v{H+r}, v{AC+8+r}, v{XR+r}")
    g("B_X2:")
    g("s_waitcnt lgkmcnt(0)")
    g("s_barrier")
    g("ds_read_b128 v[84:87], v12"); g("ds_read_b128 v[88:91], v12 offset:16")
    g("s_waitcnt lgkmcnt(0)")
    for r in range(8): g(f"v_add_f32 v{H+r}, v{H+r}, v{84+r}")
    for c in range(4): g(f"v_cvt_pk_bf16_f32 v{12+c}, v{H+2*c}, v{H+2*c+1}")
    g(f"v_add_f32 v8, v{H}, v{H+1}")
    g(f"v_mul_f32 v9, v{H}, v{H}")
    g(f"v_fmac_f32 v9, v{H+1}, v{H+1}")
    for r in range(2, 8):
        g(f"v_add_f32 v8, v8, v{H+r}")
        g(f"v_fmac_f32 v9, v{H+r}, v{H+r}")
    g("v_mov_b32 v64, v8"); g("v_mov_b32 v65, v9")
    g("v_permlane32_swap_b32 v8, v64"); g("v_permlane32_swap_b32 v9, v65")
    g("v_add_f32 v8, v8, v64"); g("v_add_f32 v9, v9, v65")
    g("s_lshl_b32 s46, s41, 2")
    g("s_and_b32 s47, s3, 1"); g("s_lshl_b32 s47, s47, 1"); g("s_add_u32 s46, s46, s47")
    g("s_lshr_b32 s47, s3, 2"); g("s_add_u32 s46, s46, s47")
    g("s_lshl_b32 s46, s46, 10")
    g("s_bfe_u32 s47, s3, 0x10001"); g("s_lshl_b32 s47, s47, 15"); g("s_add_u32 s46, s46, s47")
    g("s_add_u32 s46, s46, s52")
    g(f"s_add_u32 s45, s46, {HN}")
    g("s_lshl_b32 s46, s68, 11")
    g("s_and_b32 s47, s3, 1"); g("s_lshl_b32 s47, s47, 10"); g("s_add_u32 s46, s46, s47")
    g("s_lshr_b32 s47, s3, 2"); g("s_lshl_b32 s47, s47, 9"); g("s_add_u32 s46, s46, s47")
    g("s_bfe_u32 s47, s3, 0x10001"); g("s_lshl_b32 s47, s47, 8"); g("s_add_u32 s46, s46, s47")
    g(f"s_add_u32 s46, s46, {STW}")
    g("v_lshlrev_b32 v11, 3, v1")
    g("v_and_b32 v2, 0xff, v11")
    hstores(g, ["buffer_store_dwordx4 v[12:15], v3, s[36:39], s45 offen",
                "buffer_store_dwordx2 v[8:9], v2, s[36:39], s46 offen"], 84)
    return dma8
```

```python
from common import *
from kb_a import *
KR = 28; VR = 36; SA = 52; SB = 68; OR_ = 84; WOR = 100
NW1A = 23
def w1reg(s): return 164 + 4*s if s < NW1A else 28 + 4*(s - NW1A)
EX_L = 147456; W2L = 65536; NLF = 10
CS = 68
def hstores(g, items, rb):
    L = g.lab("HS"); D = g.lab("HD")
    g("s_cmp_eq_u32 s62, 0"); g(f"s_cbranch_scc1 {L}")
    for it in items: g(it)
    for it in items:
        op, rest = it.split(" ", 1)
        n = {"buffer_store_dwordx4": 4, "buffer_store_dwordx2": 2}[op]
        a = rest.split(", ", 1)[1]
        g(f"buffer_load_dwordx{n} v[{rb}:{rb+n-1}], {a} sc1")
    g(f"s_branch {D}")
    g(f"{L}:")
    for it in items: g(it + " sc1")
    g(f"{D}:")

def poll_words(g, vaddr, soff, lab, vt=8, sct="s69"):
    g(f"s_mov_b32 {sct}, 0")
    g(f"{lab}:")
    g(f"buffer_load_dword v{vt}, v{vaddr}, s[36:39], {soff} offen sc1")
    g(f"s_add_u32 {sct}, {sct}, 1")
    g("s_waitcnt vmcnt(0)")
    g(f"v_cmp_eq_u32 vcc, 1, v{vt}")
    g("s_cmp_eq_u64 vcc, -1")
    g(f"s_cbranch_scc1 {lab}_D")
    g(f"s_cmp_lt_u32 {sct}, {SPIN}")
    g(f"s_cbranch_scc1 {lab}")
    g(f"{lab}_D:")

def set_flag(g, off):
    L = g.lab("FS"); D = g.lab("FD")
    g("s_lshl_b32 s46, s68, 7")
    g("s_lshl_b32 s47, s3, 2")
    g("s_add_u32 s46, s46, s47")
    g(f"s_add_u32 s46, s46, {FL + off}")
    g("v_mov_b32 v8, 0"); g("v_mov_b32 v9, 1")
    g("s_mov_b64 exec, 1")
    g("s_cmp_eq_u32 s62, 0"); g(f"s_cbranch_scc1 {L}")
    g("buffer_store_dword v9, v8, s[36:39], s46 offen")
    g(f"s_branch {D}")
    g(f"{L}:")
    g("buffer_store_dword v9, v8, s[36:39], s46 offen sc1")
    g(f"{D}:")
    g("s_mov_b64 exec, -1")

def kaddr(p):
    s = slot_of(p); return (4 if s < 32 else 5), 2048*(s & 31)
def kread(g, p):
    v, o = kaddr(p); r = KR + 4*(p % 2)
    g(f"ds_read_b128 v[{r}:{r+3}], v{v} offset:{o}")
def vread(g, p):
    v, o = kaddr(p); r = VR + 8*(p % 2)
    g("s_mov_b64 exec, s[54:55]")
    g(f"ds_read_b128 v[{r}:{r+3}], v{v+2} offset:{o}")
    g(f"ds_read_b128 v[{r+4}:{r+7}], v{v+2} offset:{o+512}")
    g("s_mov_b64 exec, -1")

def kv_dma(g, i):
    L = None
    if i == 7:
        L = g.lab("SKD"); g("s_cmp_lg_u32 s3, 0"); g(f"s_cbranch_scc1 {L}")
    g(f"s_add_u32 s46, s44, {8*i}")
    g("s_and_b32 s46, s46, 63")
    g("s_lshl_b32 s46, s46, 11")
    g(f"s_add_u32 s47, s45, {16384*i}")
    g("s_mov_b32 m0, s47")
    if KVF: g(f"s_add_u32 s46, s46, {KVF}")
    else: g("s_nop 0")
    g("buffer_load_dwordx4 v3, s[36:39], s46 offen lds")
    g("buffer_load_dwordx4 v3, s[36:39], s46 offen offset:1024 lds")
    if L: g(f"{L}:")

def w_loads(g):
    ops = []
    for i in range(16):
        def f(i=i):
            g(f"buffer_load_dwordx4 v[{WOR+4*i}:{WOR+4*i+3}], v3, s[36:39], s50 offen offset:{(i&3)*1024}")
            if i & 3 == 3: g("s_add_u32 s50, s50, 4096")
        ops.append(f)
    for s in range(NW1A):
        def f(s=s):
            r = w1reg(s)
            g(f"buffer_load_dwordx4 v[{r}:{r+3}], v3, s[36:39], s51 offen offset:{(s&3)*1024}")
            if s & 3 == 3: g("s_add_u32 s51, s51, 4096")
        ops.append(f)
    return ops

def fw_set(g):
    L = g.lab("SKF")
    g("s_cmp_lg_u32 s3, 0"); g(f"s_cbranch_scc1 {L}")
    cnt4_add(g, 24, 32)
    g(f"{L}:")

NCS = int(os.environ.get("NCS", "20"))
PT = int(os.environ.get("PT", "18"))
STG = [None]
def attn_tile(g, p, pre=None, ex=None):
    A = SA if p % 2 == 0 else SB
    B = SB if p % 2 == 0 else SA
    last = p == 63
    ex = list(ex or [])
    def X():
        if ex: ex.pop(0)()
    TT = {0: 2, 5: 3, 13: 5, 14: 7, 22: 8, 30: 9, 38: 10, 46: 11, 53: 12, 63: 13}
    if STG[0] and p in TT: STG[0].alt(TT[p])
    if pre: pre()
    if STG[0] and p in (5, 13): STG[0].alt(TT[p] + 1)
    g("s_waitcnt lgkmcnt(0)")
    if p + 2 < 64: kread(g, p + 2)
    g(f"v_exp_f32 v{A+2}, v{A+2}"); g(f"v_exp_f32 v{A+3}, v{A+3}")
    k = KR + 4*((p + 1) % 2)
    if not last:
        g(f"v_mfma_f32_32x32x16_bf16 v[{B}:{B+15}], v[{k}:{k+3}], v[{QR}:{QR+3}], 0")
    if p + 1 < 64: vread(g, p + 1)
    for r in range(4, 8): g(f"v_exp_f32 v{A+r}, v{A+r}")
    for c in range(4): g(f"v_cvt_pk_bf16_f32 v{A+c}, v{A+2*c}, v{A+2*c+1}")
    g(f"v_exp_f32 v{A+8}, v{A+8}"); g(f"v_exp_f32 v{A+9}, v{A+9}")
    v = VR + 8*(p % 2)
    cz = "0" if p == 0 else f"v[{OR_}:{OR_+15}]"
    g(f"v_mfma_f32_32x32x16_bf16 v[{OR_}:{OR_+15}], v[{v}:{v+3}], v[{A}:{A+3}], {cz}")
    X()
    for r in range(10, 16): g(f"v_exp_f32 v{A+r}, v{A+r}")
    for c in range(4, 8): g(f"v_cvt_pk_bf16_f32 v{A+c}, v{A+2*c}, v{A+2*c+1}")
    if not last:
        g(f"v_exp_f32 v{B}, v{B}"); g(f"v_exp_f32 v{B+1}, v{B+1}")
    g(f"v_mfma_f32_32x32x16_bf16 v[{OR_}:{OR_+15}], v[{v+4}:{v+7}], v[{A+4}:{A+7}], v[{OR_}:{OR_+15}]")
    while ex: X()

def attention(g, ST):
    ST(6); STG[0] = ST
    g(f"v_add_u32 v4, {KV_L}, v3")
    g("v_add_u32 v5, 0x10000, v4")
    g("v_and_b32 v6, 15, v1")
    g("v_lshlrev_b32 v6, 4, v6")
    g("v_lshrrev_b32 v7, 5, v1")
    g("v_lshl_add_u32 v6, v7, 8, v6")
    g(f"v_add_u32 v6, {KV_L + 1024}, v6")
    g("v_add_u32 v7, 0x10000, v6")
    g("s_mov_b32 s54, 0x0000ffff"); g("s_mov_b32 s55, 0x0000ffff")
    g(f"v_mov_b32 v8, {KM_L}")
    g("ds_read_b64 v[10:11], v8")
    g("ds_read_b128 v[12:15], v8 offset:16")
    L = g.lab("SKQ")
    g("s_cmp_lt_u32 s3, 4"); g(f"s_cbranch_scc1 {L}")
    g("s_sub_u32 s46, s3, 4"); g("s_lshl_b32 s46, s46, 10")
    g("v_add_u32 v9, s46, v3")
    g(f"ds_read_b128 v[{QR}:{QR+3}], v9 offset:{QX_L}")
    g(f"{L}:")
    kread(g, 0); kread(g, 1)
    for r in range(16): g(f"v_mov_b32 v{VR+r}, 0x3f803f80")
    vread(g, 0)
    g("s_lshl_b32 s44, s40, 1"); g("s_add_u32 s44, s44, s3"); g("s_add_u32 s44, s44, 7")
    g("s_lshl_b32 s45, s3, 11"); g(f"s_add_u32 s45, s45, {KV_L}")
    g("s_lshl_b32 s50, s41, 16")
    g("s_and_b32 s46, s3, 1"); g("s_lshl_b32 s46, s46, 15"); g("s_add_u32 s50, s50, s46")
    g("s_lshr_b32 s46, s3, 2"); g("s_lshl_b32 s46, s46, 14"); g("s_add_u32 s50, s50, s46")
    g(f"s_add_u32 s50, s50, {WOF}")
    g("s_min_u32 s46, s3, 6"); g("s_mul_i32 s47, s41, 7"); g("s_add_u32 s53, s46, s47")
    g("s_lshl_b32 s51, s53, 15"); g(f"s_add_u32 s51, s51, {W1F}")
    g("s_waitcnt lgkmcnt(0)")
    g("v_max_f32 v12, v12, v13"); g("v_max_f32 v14, v14, v15"); g("v_max_f32 v12, v12, v14")
    g("v_mul_f32 v12, v12, v10")
    g("v_readfirstlane_b32 s62, v11")
    g(f"v_mov_b32 v13, {f32(3900.0)}")
    g("v_cmp_le_f32 vcc, v12, v13")
    g("s_cmp_eq_u64 vcc, -1")
    g("s_cbranch_scc0 B_SLOW")
    g(f"v_mfma_f32_32x32x16_bf16 v[{SA}:{SA+15}], v[{KR}:{KR+3}], v[{QR}:{QR+3}], 0")
    g(f"v_exp_f32 v{SA}, v{SA}"); g(f"v_exp_f32 v{SA+1}, v{SA+1}")
    wl = w_loads(g)
    for p in range(64):
        pre = None; ex = []
        if p < 8: ex.append(lambda p=p: kv_dma(g, p))
        if p == 5:
            def pre():
                g("s_waitcnt vmcnt(8)"); g("s_barrier"); fw_set(g)
        if p == PT - 4:
            def f():
                L = g.lab("SKP")
                g("s_cmp_lg_u32 s3, 5"); g(f"s_cbranch_scc1 {L}")
                cnt4_addr(g, 8)
                g("buffer_load_dword v8, v9, s[24:27], 0 offen offset:32 sc1")
                g(f"{L}:")
            ex.append(f)
        if p == PT:
            def pre():
                L = g.lab("SKP")
                g("s_waitcnt vmcnt(0)")
                g("s_cmp_lg_u32 s3, 5"); g(f"s_cbranch_scc1 {L}")
                g("v_cmp_eq_u32 vcc, 64, v8")
                g("s_cmp_eq_u64 vcc, -1")
                g(f"s_cbranch_scc1 {L}")
                poll_bytes(g, 24, 32, "B_PW")
                g(f"{L}:")
                g("s_barrier")
        if p > PT and wl: ex.append(wl.pop(0))
        attn_tile(g, p, pre, ex)
    assert not wl
    g("s_branch B_OEPI")
    g("B_SLOW:")
    g("s_barrier")
    for i in range(8): kv_dma(g, i)
    g("s_waitcnt vmcnt(0)")
    g("s_barrier")
    fw_set(g)
    NM = 100
    g("v_mov_b32 v8, v4")
    g("v_mov_b32 v10, 0xff800000")
    g("s_mov_b32 s46, 0")
    g("B_S1:")
    g(f"ds_read_b128 v[{KR}:{KR+3}], v8")
    g("v_add_u32 v8, 2048, v8")
    g("s_waitcnt lgkmcnt(0)")
    g(f"v_mfma_f32_32x32x16_bf16 v[{SA}:{SA+15}], v[{KR}:{KR+3}], v[{QR}:{QR+3}], 0")
    for r in range(0, 16, 2):
        g(f"v_max3_f32 v10, v10, v{SA+r}, v{SA+r+1}")
    g("s_add_u32 s46, s46, 1"); g("s_cmp_lt_u32 s46, 64"); g("s_cbranch_scc1 B_S1")
    g("v_mov_b32 v11, v10")
    g("v_permlane32_swap_b32 v10, v11")
    g("v_max_f32 v10, v10, v11")
    for r in range(16):
        g(f"v_sub_f32 v{NM+r}, 0, v10")
        g(f"v_mov_b32 v{OR_+r}, 0")
    g("v_mov_b32 v8, v4"); g("v_mov_b32 v9, v6")
    g("s_mov_b32 s46, 0")
    g("B_S2:")
    g(f"ds_read_b128 v[{KR}:{KR+3}], v8")
    g("s_mov_b64 exec, s[54:55]")
    g(f"ds_read_b128 v[{VR}:{VR+3}], v9")
    g(f"ds_read_b128 v[{VR+4}:{VR+7}], v9 offset:512")
    g("s_mov_b64 exec, -1")
    g("v_add_u32 v8, 2048, v8"); g("v_add_u32 v9, 2048, v9")
    g("s_waitcnt lgkmcnt(0)")
    g(f"v_mfma_f32_32x32x16_bf16 v[{SA}:{SA+15}], v[{KR}:{KR+3}], v[{QR}:{QR+3}], v[{NM}:{NM+15}]")
    for r in range(16): g(f"v_exp_f32 v{SA+r}, v{SA+r}")
    for c in range(8): g(f"v_cvt_pk_bf16_f32 v{SA+c}, v{SA+2*c}, v{SA+2*c+1}")
    g(f"v_mfma_f32_32x32x16_bf16 v[{OR_}:{OR_+15}], v[{VR}:{VR+3}], v[{SA}:{SA+3}], v[{OR_}:{OR_+15}]")
    g(f"v_mfma_f32_32x32x16_bf16 v[{OR_}:{OR_+15}], v[{VR+4}:{VR+7}], v[{SA+4}:{SA+7}], v[{OR_}:{OR_+15}]")
    g("s_add_u32 s46, s46, 1"); g("s_cmp_lt_u32 s46, 64"); g("s_cbranch_scc1 B_S2")
    poll_bytes(g, 24, 32, "B_PW2")
    for f in w_loads(g): f()
    g("B_OEPI:")
    ST(7)
    g(f"v_rcp_f32 v8, v{OR_+8}")
    for r in range(8): g(f"v_mul_f32 v{OR_+r}, v{OR_+r}, v8")
    for c in range(4): g(f"v_cvt_pk_bf16_f32 v{12+c}, v{OR_+2*c}, v{OR_+2*c+1}")
    g("s_lshl_b32 s46, s41, 2")
    g("s_and_b32 s47, s3, 1"); g("s_lshl_b32 s47, s47, 1"); g("s_add_u32 s46, s46, s47")
    g("s_lshr_b32 s47, s3, 2"); g("s_add_u32 s46, s46, s47")
    g("s_lshl_b32 s46, s46, 10")
    g("s_bfe_u32 s47, s3, 0x10001"); g("s_lshl_b32 s47, s47, 15"); g("s_add_u32 s46, s46, s47")
    g("s_lshl_b32 s52, s40, 16")
    g("s_add_u32 s46, s46, s52")
    g(f"s_add_u32 s46, s46, {OF}")
    g("s_waitcnt vmcnt(0)")
    hstores(g, ["buffer_store_dwordx4 v[12:15], v3, s[36:39], s46 offen"], 84)
    for s in range(NW1A, 32):
        r = w1reg(s)
        g(f"buffer_load_dwordx4 v[{r}:{r+3}], v3, s[36:39], s51 offen offset:{(s&3)*1024}")
        if s & 3 == 3: g("s_add_u32 s51, s51, 4096")
    for r in range(4): g(f"v_mov_b32 v{64+r}, 0x3f803f80")
    def cs(s):
        r = w1reg(s)
        c = "0" if s == 0 else f"v[{CS}:{CS+15}]"
        g(f"v_mfma_f32_32x32x16_bf16 v[{CS}:{CS+15}], v[{r}:{r+3}], v[64:67], {c}")
    for s in range(NCS): cs(s)
    g(f"s_waitcnt vmcnt({32-NW1A})")
    set_flag(g, 0)
    for s in range(NCS, 32):
        if s == NW1A: g("s_waitcnt vmcnt(1)")
        cs(s)
    g("s_barrier")
    g("v_and_b32 v10, 7, v1"); g("v_lshlrev_b32 v10, 2, v10")
    g("s_lshl_b32 s48, s40, 3"); g("s_add_u32 s48, s48, s3"); g("s_lshl_b32 s48, s48, 7")
    g(f"s_add_u32 s48, s48, {FL}")
    poll_words(g, 10, "s48", "B_PO")
    ST(8)
    def dma8(base):
        g("s_lshl_b32 s46, s3, 12")
        g("s_add_u32 s47, s46, s52"); g(f"s_add_u32 s47, s47, {base}")
        g("s_mov_b32 m0, s46")
        g("s_nop 0")
        for i in range(4): g(f"buffer_load_dwordx4 v3, s[36:39], s47 offen offset:{i*1024} lds")
        g("s_add_u32 s46, s46, 32768"); g("s_add_u32 s47, s47, 32768")
        g("s_mov_b32 m0, s46")
        g("s_nop 0")
        for i in range(4): g(f"buffer_load_dwordx4 v3, s[36:39], s47 offen offset:{i*1024} lds")
    dma8(OF)
    g("s_mul_i32 s46, s41, 112"); g("s_mul_i32 s47, s3, 14"); g("s_add_u32 s46, s46, s47")
    g("s_lshl_b32 s46, s46, 11"); g(f"s_add_u32 s56, s46, {W2F}")
    g(f"s_mul_i32 s47, s3, {NLF*1024}"); g(f"s_add_u32 s47, s47, {W2L}")
    g("s_mov_b32 s46, s56")
    for i in range(NLF):
        if i % 4 == 0:
            g("s_mov_b32 m0, s47")
            g("s_add_u32 s47, s47, 4096")
        g(f"buffer_load_dwordx4 v3, s[36:39], s46 offen offset:{(i&3)*1024} lds")
        if i % 4 == 3: g("s_add_u32 s46, s46, 4096")
    g("s_bfe_u32 s46, s3, 0x10001"); g("s_lshl_b32 s46, s46, 15")
    g("s_lshr_b32 s47, s3, 2"); g("s_lshl_b32 s47, s47, 14"); g("s_add_u32 s46, s46, s47")
    g("v_add_u32 v11, s46, v3")
    g("s_and_b32 s46, s3, 1")
    g("s_cmp_eq_u32 s46, 0")
    g("s_mov_b32 s54, 0x01000c0c"); g("s_mov_b32 s57, 0x03020c0c")
    g("s_cselect_b32 s57, s54, s57")
    for r in range(8): g(f"v_perm_b32 v{XR+r}, v{XR+r}, v{XR+r}, s57")
    g(f"s_waitcnt vmcnt({NLF})")
    g("s_barrier")
    ST(9)
    RING = [64, 24, 12, 4]; AC = OR_
    def bl(i): g(f"ds_read_b128 v[{RING[i%4]}:{RING[i%4]+3}], v11 offset:{i*1024}")
    for i in range(4): bl(i)
    for i in range(16):
        b = RING[i % 4]
        g(f"s_waitcnt lgkmcnt({min(3, 15-i)})")
        c = "0" if i == 0 else f"v[{AC}:{AC+15}]"
        g(f"v_mfma_f32_32x32x16_bf16 v[{AC}:{AC+15}], v[{WOR+4*i}:{WOR+4*i+3}], v[{b}:{b+3}], {c}")
        if i + 4 < 16: bl(i + 4)
    H = 100
    g("s_lshl_b32 s46, s3, 11"); g(f"s_add_u32 s46, s46, {EX_L}")
    g("v_lshlrev_b32 v12, 5, v1")
    g("v_add_u32 v13, s46, v12")
    g("s_xor_b32 s46, s46, 8192")
    g("v_add_u32 v12, s46, v12")
    g("s_cmp_ge_u32 s3, 4"); g("s_cbranch_scc1 B_X1")
    g(f"ds_write_b128 v13, v[{AC+8}:{AC+11}]"); g(f"ds_write_b128 v13, v[{AC+12}:{AC+15}] offset:16")
    for r in range(8): g(f"v_add_f32 v{H+r}, v{AC+r}, v{XR+r}")
    g("s_branch B_X2")
    g("B_X1:")
    g(f"ds_write_b128 v13, v[{AC}:{AC+3}]"); g(f"ds_write_b128 v13, v[{AC+4}:{AC+7}] offset:16")
    for r in range(8): g(f"v_add_f32 v{H+r}, v{AC+8+r}, v{XR+r}")
    g("B_X2:")
    g("s_waitcnt lgkmcnt(0)")
    g("s_barrier")
    g("ds_read_b128 v[84:87], v12"); g("ds_read_b128 v[88:91], v12 offset:16")
    g("s_waitcnt lgkmcnt(0)")
    for r in range(8): g(f"v_add_f32 v{H+r}, v{H+r}, v{84+r}")
    for c in range(4): g(f"v_cvt_pk_bf16_f32 v{12+c}, v{H+2*c}, v{H+2*c+1}")
    g(f"v_add_f32 v8, v{H}, v{H+1}")
    g(f"v_mul_f32 v9, v{H}, v{H}")
    g(f"v_fmac_f32 v9, v{H+1}, v{H+1}")
    for r in range(2, 8):
        g(f"v_add_f32 v8, v8, v{H+r}")
        g(f"v_fmac_f32 v9, v{H+r}, v{H+r}")
    g("v_mov_b32 v64, v8"); g("v_mov_b32 v65, v9")
    g("v_permlane32_swap_b32 v8, v64"); g("v_permlane32_swap_b32 v9, v65")
    g("v_add_f32 v8, v8, v64"); g("v_add_f32 v9, v9, v65")
    g("s_lshl_b32 s46, s41, 2")
    g("s_and_b32 s47, s3, 1"); g("s_lshl_b32 s47, s47, 1"); g("s_add_u32 s46, s46, s47")
    g("s_lshr_b32 s47, s3, 2"); g("s_add_u32 s46, s46, s47")
    g("s_lshl_b32 s46, s46, 10")
    g("s_bfe_u32 s47, s3, 0x10001"); g("s_lshl_b32 s47, s47, 15"); g("s_add_u32 s46, s46, s47")
    g("s_add_u32 s46, s46, s52")
    g(f"s_add_u32 s45, s46, {HN}")
    g("s_lshl_b32 s46, s68, 11")
    g("s_and_b32 s47, s3, 1"); g("s_lshl_b32 s47, s47, 10"); g("s_add_u32 s46, s46, s47")
    g("s_lshr_b32 s47, s3, 2"); g("s_lshl_b32 s47, s47, 9"); g("s_add_u32 s46, s46, s47")
    g("s_bfe_u32 s47, s3, 0x10001"); g("s_lshl_b32 s47, s47, 8"); g("s_add_u32 s46, s46, s47")
    g(f"s_add_u32 s46, s46, {STW}")
    g("v_lshlrev_b32 v11, 3, v1")
    g("v_and_b32 v2, 0xff, v11")
    hstores(g, ["buffer_store_dwordx4 v[12:15], v3, s[36:39], s45 offen",
                "buffer_store_dwordx2 v[8:9], v2, s[36:39], s46 offen"], 84)
    return dma8
```

```python
import os
from common import *
from kb_a import *
from kb_b import *
F1MODE = int(os.environ.get("F1M", "0"))
AC0 = 100; AC1 = 116; BI = 148
BR1 = [132, 136, 140, 144, 84, 88, 92, 96]
NRF = 28 - NLF
W2R = 164
def mish_ops(g, a, t0, t1):
    return [lambda: g(f"v_exp_f32 v{t0}, v{a}"),
            lambda: g(f"v_add_f32 v{t1}, 2.0, v{t0}"),
            lambda: g(f"v_fma_f32 v{t0}, v{t0}, v{t1}, 2.0"),
            lambda: g(f"v_rcp_f32 v{t0}, v{t0}"),
            lambda: g(f"v_fma_f32 v{t0}, v{t0}, s58, v2"),
            lambda: g(f"v_mul_f32 v{a}, v{a}, v{t0}")]
def mish_stream(g, acc, dst, va, vb, T=8):
    ops = []
    for grp in range(4):
        for i in range(4):
            r = 4*grp + i
            ops.append(lambda r=r, i=i: g(f"v_fma_f32 v{T+2*i}, v{vb}, v{CS+r}, v{BI+r}"))
        for i in range(4):
            r = 4*grp + i
            ops.append(lambda r=r, i=i: g(f"v_fma_f32 v{acc+r}, v{va}, v{acc+r}, v{T+2*i}"))
        per = [mish_ops(g, acc + 4*grp + i, T + 2*i, T + 2*i + 1) for i in range(4)]
        for k in range(6):
            for i in range(4): ops.append(per[i][k])
        for i in range(2):
            r = acc + 4*grp + 2*i
            ops.append(lambda r=r, d=dst + 2*grp + i: g(f"v_cvt_pk_bf16_f32 v{d}, v{r}, v{r+1}"))
    return ops

def ffn1(g, ST, dma8):
    srd(g, 20, 64, 1792*2)
    g("s_lshr_b32 s47, s53, 1"); g("s_lshl_b32 s47, s47, 7")
    g("v_lshrrev_b32 v4, 5, v1"); g("v_lshlrev_b32 v4, 4, v4")
    for gp in range(4):
        g(f"buffer_load_dwordx4 v[{BI+4*gp}:{BI+4*gp+3}], v4, s[20:23], s47 offen offset:{gp*32}")
    g("s_waitcnt vmcnt(4)")
    set_flag(g, 32)
    ST(10)
    g("s_add_u32 s49, s48, 32")
    poll_words(g, 10, "s49", "C_PH")
    dma8(HN)
    g("s_lshl_b32 s46, s40, 3"); g("s_add_u32 s46, s46, s3"); g("s_lshl_b32 s46, s46, 11")
    g(f"s_add_u32 s46, s46, {STW}")
    for q in range(4):
        g(f"buffer_load_dwordx2 v[{84+2*q}:{85+2*q}], v11, s[36:39], s46 offen offset:{q*512} sc1")
    g("s_and_b32 s47, s53, 1")
    g("s_cmp_eq_u32 s47, 0")
    g("s_mov_b32 s54, 0x01000c0c"); g("s_mov_b32 s57, 0x03020c0c")
    g("s_cselect_b32 s57, s54, s57")
    g(f"s_mov_b32 s58, {f32(-2.0/LOG2E)}")
    g(f"v_mov_b32 v2, {f32(1.0/LOG2E)}")
    g(f"s_mov_b32 s59, {f32(LOG2E)}")
    for r in range(16): g(f"v_perm_b32 v{BI+r}, v{BI+r}, v{BI+r}, s57")
    for r in range(16): g(f"v_mul_f32 v{BI+r}, s59, v{BI+r}")
    g("s_lshl_b32 s50, s40, 1"); g("s_mul_i32 s50, s50, 112")
    g("s_lshl_b32 s51, s53, 1"); g("s_add_u32 s50, s50, s51")
    g("s_lshl_b32 s50, s50, 10"); g(f"s_add_u32 s50, s50, {ACT}")
    g(f"s_add_u32 s51, s50, {112*1024}")
    g(f"s_add_u32 s60, s56, {NLF*1024}")
    g("s_waitcnt vmcnt(8)")
    g("s_waitcnt vmcnt(0)")
    g("v_add_f32 v84, v84, v86"); g("v_add_f32 v85, v85, v87")
    g("v_add_f32 v88, v88, v90"); g("v_add_f32 v89, v89, v91")
    g("v_add_f32 v84, v84, v88"); g("v_add_f32 v85, v85, v89")
    g("s_lshl_b32 s46, s3, 11"); g("s_xor_b32 s46, s46, 8192"); g(f"s_add_u32 s46, s46, {EX_L}")
    g("v_add_u32 v12, s46, v11")
    g("ds_write_b64 v12, v[84:85]")
    def w2load(i):
        r = W2R + 4*i
        g(f"buffer_load_dwordx4 v[{r}:{r+3}], v3, s[36:39], s60 offen offset:{(i&3)*1024}")
        if i & 3 == 3: g("s_add_u32 s60, s60, 4096")
    g("s_waitcnt lgkmcnt(0)")
    g("s_barrier")
    ST(11)
    g("s_cmp_eq_u32 s3, 7")
    g("s_cbranch_scc1 C_W7")
    F1M = F1MODE >= 1
    seq = [(s, rt) for s in range(32) for rt in range(2)]
    if F1M: seq = [(s, 0) for s in range(32)] + [(s, 1) for s in range(32)]
    NB = len(BR1)
    g("v_and_b32 v12, 31, v1"); g("v_lshlrev_b32 v12, 3, v12"); g(f"v_add_u32 v12, {EX_L}, v12")
    for rt in range(2):
        for q in range(8):
            g(f"ds_read_b64 v[{100+16*rt+2*q}:{101+16*rt+2*q}], v12 offset:{((q*2048) ^ 8192) + rt*256}")
        if rt == 0: g("s_waitcnt lgkmcnt(7)")
    def bload(i):
        s, rt = seq[i]; b = BR1[i % NB]
        g(f"ds_read_b128 v[{b}:{b+3}], v3 offset:{rt*32768 + s*1024}")
    g("s_waitcnt lgkmcnt(0)")
    for i in range(NB): bload(i)
    def stat_calc(z, va, vb):
        for st in (8, 4, 2):
            for q in range(0, st, 2):
                g(f"v_add_f32 v{z+q}, v{z+q}, v{z+q+st}")
                g(f"v_add_f32 v{z+q+1}, v{z+q+1}, v{z+q+st+1}")
        g(f"v_mul_f32 v{z}, {f32(1/512)}, v{z}")
        g(f"v_mul_f32 v{z+1}, {f32(1/512)}, v{z+1}")
        g(f"v_fma_f32 v{z+1}, -v{z}, v{z}, v{z+1}")
        g(f"v_max_f32 v{z+1}, 0, v{z+1}")
        g(f"v_add_f32 v{z+1}, {f32(1e-5)}, v{z+1}")
        g(f"v_rsq_f32 v{z+1}, v{z+1}")
        g(f"v_mul_f32 v{va}, s59, v{z+1}")
        g(f"v_mul_f32 v{vb}, v{z}, v{va}")
        g(f"v_sub_f32 v{vb}, 0, v{vb}")
    stat_calc(100, 4, 5); stat_calc(116, 6, 7)
    D0 = 16 if F1M else 84
    m0 = mish_stream(g, AC0, D0, 4, 5)
    per = (len(m0) + 29) // 30
    for i, (s, rt) in enumerate(seq):
        b = BR1[i % NB]; acc = AC0 if rt == 0 else AC1
        g(f"s_waitcnt lgkmcnt({min(NB-1, 63-i)})")
        c = "0" if s == 0 else f"v[{acc}:{acc+15}]"
        r = w1reg(s)
        g(f"v_mfma_f32_32x32x16_bf16 v[{acc}:{acc+15}], v[{r}:{r+3}], v[{b}:{b+3}], {c}")
        if i + NB < 64: bload(i + NB)
        if rt == 1 and s < NRF and F1MODE != 2: w2load(s)
        if F1M and rt == 1 and s >= 1:
            for _ in range(per):
                if m0: m0.pop(0)()
    for o in m0: o()
    for o in mish_stream(g, AC1, 92, 6, 7): o()
    hstores(g, [f"buffer_store_dwordx4 v[{D0}:{D0+3}], v3, s[36:39], s50 offen",
                f"buffer_store_dwordx4 v[{D0+4}:{D0+7}], v3, s[36:39], s50 offen offset:1024",
                "buffer_store_dwordx4 v[92:95], v3, s[36:39], s51 offen",
                "buffer_store_dwordx4 v[96:99], v3, s[36:39], s51 offen offset:1024"], 132)
    g("s_branch C_END")
    g("C_W7:")
    for i in range(NRF): w2load(i)
    g("C_END:")

def ffn2(g, ST):
    AC = 100; AL = 236; HR = 64; BW = 4; NB = 14; NA = 4
    SLAB_ROW = 272; SLAB_RT = 32*272; SLAB_SZ = 2*SLAB_RT
    g("s_waitcnt vmcnt(0)")
    set_flag(g, 64)
    ST(12)
    if F1MODE == 2:
        g("s_cmp_eq_u32 s3, 7"); g("s_cbranch_scc1 D_W7")
        for i in range(NRF):
            r = W2R + 4*i
            g(f"buffer_load_dwordx4 v[{r}:{r+3}], v3, s[36:39], s60 offen offset:{(i&3)*1024}")
            if i & 3 == 3: g("s_add_u32 s60, s60, 4096")
        g("D_W7:")
    g("v_lshrrev_b32 v60, 3, v0")
    g("v_and_b32 v61, 7, v0")
    g("v_lshrrev_b32 v62, 5, v60"); g("v_lshlrev_b32 v62, 15, v62")
    g("v_and_b32 v63, 31, v60"); g("v_lshl_add_u32 v62, v63, 4, v62")
    g("v_and_b32 v63, 1, v61"); g("v_lshl_add_u32 v62, v63, 9, v62")
    g("v_bfe_u32 v63, v61, 1, 1"); g("v_lshl_add_u32 v62, v63, 3, v62")
    g("v_lshrrev_b32 v63, 2, v61"); g("v_lshl_add_u32 v62, v63, 10, v62")
    g("s_lshl_b32 s46, s41, 12"); g("v_add_u32 v62, s46, v62")
    g(f"ds_read_b64 v[{HR}:{HR+1}], v62")
    g(f"ds_read_b64 v[{HR+2}:{HR+3}], v62 offset:2048")
    g("v_lshlrev_b32 v62, 10, v60"); g("v_lshl_add_u32 v62, v61, 4, v62")
    g("s_lshl_b32 s53, s41, 7"); g("s_add_u32 s53, s53, s52")
    srd(g, 20, 16, 0x200000)
    g("s_lshl_b32 s50, s40, 1"); g("s_mul_i32 s50, s50, 112")
    g("s_mul_i32 s51, s3, 14"); g("s_add_u32 s50, s50, s51")
    g("s_lshl_b32 s50, s50, 10"); g(f"s_add_u32 s50, s50, {ACT}")
    g(f"s_add_u32 s51, s50, {112*1024}")
    g(f"s_mul_i32 s47, s3, {NLF*1024}"); g(f"s_add_u32 s47, s47, {W2L}")
    g("v_add_u32 v63, s47, v3")
    g("v_and_b32 v2, 7, v1"); g("v_lshlrev_b32 v2, 2, v2")
    g("s_add_u32 s46, s48, 64")
    poll_words(g, 2, "s46", "D_PA", vt=59)
    ST(13)
    seq = [(i, rt) for i in range(14) for rt in range(2)]
    issued = []
    def bload(k):
        i, rt = seq[k]; r = BW + 4*(k % NB); sp = 50 + rt
        g(f"buffer_load_dwordx4 v[{r}:{r+3}], v3, s[36:39], s{sp} offen offset:{(i&3)*1024}")
        issued.append(k)
        if i & 3 == 3: g(f"s_add_u32 s{sp}, s{sp}, 4096")
    for k in range(NB): bload(k)
    def areg(f): return AL + 4*(f % NA) if f < NLF else W2R + 4*(f - NLF)
    def lds_a(f):
        if f < NLF: g(f"ds_read_b128 v[{AL+4*(f%NA)}:{AL+4*(f%NA)+3}], v63 offset:{f*1024}")
    for f in range(NA): lds_a(f)
    nl = NA
    for k, (i, rt) in enumerate(seq):
        vm = len(issued) - 1 - issued.index(k)
        w = f"s_waitcnt vmcnt({vm})"
        if rt == 0 and 2*i < NLF:
            w += f" lgkmcnt({min(nl, NLF) - (2*i + 2)})"
        g(w)
        b = BW + 4*(k % NB)
        for e in range(2):
            a = areg(2*i + e); acc = AC + 32*rt + 16*e
            c = "0" if i == 0 else f"v[{acc}:{acc+15}]"
            g(f"v_mfma_f32_32x32x16_bf16 v[{acc}:{acc+15}], v[{a}:{a+3}], v[{b}:{b+3}], {c}")
        if k + NB < 28: bload(k + NB)
        if rt == 1:
            for f in (2*i + NA, 2*i + NA + 1):
                if f < NLF: lds_a(f); nl = f + 1
    g("s_barrier")
    g("v_and_b32 v4, 31, v1")
    g(f"v_mul_u32_u24 v4, {SLAB_ROW}, v4")
    g("v_lshrrev_b32 v5, 5, v1")
    g("v_lshl_add_u32 v4, v5, 5, v4")
    g(f"s_mul_i32 s47, s3, {SLAB_SZ}")
    g("v_add_u32 v4, s47, v4")
    for rt in range(2):
        a = AC + 32*rt
        for gp in range(4):
            g(f"ds_write_b128 v4, v[{a+4*gp}:{a+4*gp+3}] offset:{rt*SLAB_RT + gp*64}")
            g(f"ds_write_b128 v4, v[{a+16+4*gp}:{a+16+4*gp+3}] offset:{rt*SLAB_RT + gp*64+16}")
    g("v_and_b32 v5, 31, v60")
    g(f"v_mul_u32_u24 v5, {SLAB_ROW}, v5")
    g("v_lshl_add_u32 v5, v61, 5, v5")
    g("v_lshrrev_b32 v6, 5, v60")
    g(f"v_mul_u32_u24 v6, {SLAB_RT}, v6")
    g("v_add_u32 v5, v5, v6")
    g(f"v_add_u32 v6, {4*SLAB_SZ}, v5")
    for d in range(2):
        g(f"v_lshlrev_b32 v{48+2*d}, 16, v{HR+d}")
        g(f"v_and_b32 v{49+2*d}, 0xffff0000, v{HR+d}")
        g(f"v_lshlrev_b32 v{52+2*d}, 16, v{HR+2+d}")
        g(f"v_and_b32 v{53+2*d}, 0xffff0000, v{HR+2+d}")
    g("s_waitcnt lgkmcnt(0)")
    g("s_barrier")
    R = 100
    def rd(q):
        v = 5 if q < 4 else 6
        g(f"ds_read_b128 v[{R+8*q}:{R+8*q+3}], v{v} offset:{(q&3)*SLAB_SZ}")
        g(f"ds_read_b128 v[{R+8*q+4}:{R+8*q+7}], v{v} offset:{(q&3)*SLAB_SZ+16}")
    for q in range(7): rd(q)
    for q in range(8):
        if q == 0:
            g("s_waitcnt lgkmcnt(12)"); rd(7)
            g("s_waitcnt lgkmcnt(14)")
        else:
            g(f"s_waitcnt lgkmcnt({14-2*q})")
        for r in range(8):
            g(f"v_add_f32 v{48+r}, v{48+r}, v{R+8*q+r}")
    for rr in range(4):
        g(f"v_cvt_pk_bf16_f32 v{56+rr}, v{48+rr}, v{52+rr}")
    g("buffer_store_dwordx4 v[56:59], v62, s[20:23], s53 offen")
```

```python
from common import *
from kb_a import *
KR = 28; VR = 36; SA = 52; SB = 68; OR_ = 84; WOR = 100
NW1A = 23
def w1reg(s): return 164 + 4*s if s < NW1A else 28 + 4*(s - NW1A)
EX_L = 147456; W2L = 65536; NLF = 10
CS = 68
def hstores(g, items, rb):
    L = g.lab("HS"); D = g.lab("HD")
    g("s_cmp_eq_u32 s62, 0"); g(f"s_cbranch_scc1 {L}")
    for it in items: g(it)
    for it in items:
        op, rest = it.split(" ", 1)
        n = {"buffer_store_dwordx4": 4, "buffer_store_dwordx2": 2}[op]
        a = rest.split(", ", 1)[1]
        g(f"buffer_load_dwordx{n} v[{rb}:{rb+n-1}], {a} sc1")
    g(f"s_branch {D}")
    g(f"{L}:")
    for it in items: g(it + " sc1")
    g(f"{D}:")

def poll_words(g, vaddr, soff, lab, vt=8, sct="s69"):
    g(f"s_mov_b32 {sct}, 0")
    g(f"{lab}:")
    g(f"buffer_load_dword v{vt}, v{vaddr}, s[36:39], {soff} offen sc1")
    g(f"s_add_u32 {sct}, {sct}, 1")
    g("s_waitcnt vmcnt(0)")
    g(f"v_cmp_eq_u32 vcc, 1, v{vt}")
    g("s_cmp_eq_u64 vcc, -1")
    g(f"s_cbranch_scc1 {lab}_D")
    g(f"s_cmp_lt_u32 {sct}, {SPIN}")
    g(f"s_cbranch_scc1 {lab}")
    g(f"{lab}_D:")

def set_flag(g, off):
    L = g.lab("FS"); D = g.lab("FD")
    g("s_lshl_b32 s46, s68, 7")
    g("s_lshl_b32 s47, s3, 2")
    g("s_add_u32 s46, s46, s47")
    g(f"s_add_u32 s46, s46, {FL + off}")
    g("v_mov_b32 v8, 0"); g("v_mov_b32 v9, 1")
    g("s_mov_b64 exec, 1")
    g("s_cmp_eq_u32 s62, 0"); g(f"s_cbranch_scc1 {L}")
    g("buffer_store_dword v9, v8, s[36:39], s46 offen")
    g(f"s_branch {D}")
    g(f"{L}:")
    g("buffer_store_dword v9, v8, s[36:39], s46 offen sc1")
    g(f"{D}:")
    g("s_mov_b64 exec, -1")

def kaddr(p):
    s = slot_of(p); return (4 if s < 32 else 5), 2048*(s & 31)
def kread(g, p):
    v, o = kaddr(p); r = KR + 4*(p % 2)
    g(f"ds_read_b128 v[{r}:{r+3}], v{v} offset:{o}")
def vread(g, p):
    v, o = kaddr(p); r = VR + 8*(p % 2)
    g("s_mov_b64 exec, s[54:55]")
    g(f"ds_read_b128 v[{r}:{r+3}], v{v+2} offset:{o}")
    g(f"ds_read_b128 v[{r+4}:{r+7}], v{v+2} offset:{o+512}")
    g("s_mov_b64 exec, -1")

def kv_dma(g, i):
    L = None
    if i == 7:
        L = g.lab("SKD"); g("s_cmp_lg_u32 s3, 0"); g(f"s_cbranch_scc1 {L}")
    g(f"s_add_u32 s46, s44, {8*i}")
    g("s_and_b32 s46, s46, 63")
    g("s_lshl_b32 s46, s46, 11")
    g(f"s_add_u32 s47, s45, {16384*i}")
    g("s_mov_b32 m0, s47")
    if KVF: g(f"s_add_u32 s46, s46, {KVF}")
    else: g("s_nop 0")
    g("buffer_load_dwordx4 v3, s[36:39], s46 offen lds")
    g("buffer_load_dwordx4 v3, s[36:39], s46 offen offset:1024 lds")
    if L: g(f"{L}:")

def w_loads(g):
    ops = []
    for i in range(16):
        def f(i=i):
            g(f"buffer_load_dwordx4 v[{WOR+4*i}:{WOR+4*i+3}], v3, s[36:39], s50 offen offset:{(i&3)*1024}")
            if i & 3 == 3: g("s_add_u32 s50, s50, 4096")
        ops.append(f)
    for s in range(NW1A):
        def f(s=s):
            r = w1reg(s)
            g(f"buffer_load_dwordx4 v[{r}:{r+3}], v3, s[36:39], s51 offen offset:{(s&3)*1024}")
            if s & 3 == 3: g("s_add_u32 s51, s51, 4096")
        ops.append(f)
    return ops

def fw_set(g):
    L = g.lab("SKF")
    g("s_cmp_lg_u32 s3, 0"); g(f"s_cbranch_scc1 {L}")
    cnt4_add(g, 24, 32)
    g(f"{L}:")

NCS = int(os.environ.get("NCS", "20"))
FWE = os.environ.get("FWE", "1") == "1"
CK = int(os.environ.get("CK", "2"))
PT = int(os.environ.get("PT", "13"))
STG = [None]
def attn_tile(g, p, pre=None, ex=None):
    A = SA if p % 2 == 0 else SB
    B = SB if p % 2 == 0 else SA
    last = p == 63
    ex = list(ex or [])
    def X():
        if ex: ex.pop(0)()
    TT = {0: 2, 5: 3, 13: 5, 14: 7, 22: 8, 30: 9, 38: 10, 46: 11, 53: 12, 63: 13}
    if STG[0] and p in TT: STG[0].alt(TT[p])
    if pre: pre()
    if STG[0] and p in (5, 13): STG[0].alt(TT[p] + 1)
    g("s_waitcnt lgkmcnt(0)")
    if p + 2 < 64: kread(g, p + 2)
    g(f"v_exp_f32 v{A+2}, v{A+2}"); g(f"v_exp_f32 v{A+3}, v{A+3}")
    k = KR + 4*((p + 1) % 2)
    if not last:
        g(f"v_mfma_f32_32x32x16_bf16 v[{B}:{B+15}], v[{k}:{k+3}], v[{QR}:{QR+3}], 0")
    if p + 1 < 64: vread(g, p + 1)
    for r in range(4, 8): g(f"v_exp_f32 v{A+r}, v{A+r}")
    for c in range(4): g(f"v_cvt_pk_bf16_f32 v{A+c}, v{A+2*c}, v{A+2*c+1}")
    g(f"v_exp_f32 v{A+8}, v{A+8}"); g(f"v_exp_f32 v{A+9}, v{A+9}")
    v = VR + 8*(p % 2)
    cz = "0" if p == 0 else f"v[{OR_}:{OR_+15}]"
    g(f"v_mfma_f32_32x32x16_bf16 v[{OR_}:{OR_+15}], v[{v}:{v+3}], v[{A}:{A+3}], {cz}")
    X()
    for r in range(10, 16): g(f"v_exp_f32 v{A+r}, v{A+r}")
    for c in range(4, 8): g(f"v_cvt_pk_bf16_f32 v{A+c}, v{A+2*c}, v{A+2*c+1}")
    if not last:
        g(f"v_exp_f32 v{B}, v{B}"); g(f"v_exp_f32 v{B+1}, v{B+1}")
    g(f"v_mfma_f32_32x32x16_bf16 v[{OR_}:{OR_+15}], v[{v+4}:{v+7}], v[{A+4}:{A+7}], v[{OR_}:{OR_+15}]")
    while ex: X()

def attention(g, ST):
    ST(6); STG[0] = ST
    if FWE: fw_set(g)
    g(f"v_add_u32 v4, {KV_L}, v3")
    g("v_add_u32 v5, 0x10000, v4")
    g("v_and_b32 v6, 15, v1")
    g("v_lshlrev_b32 v6, 4, v6")
    g("v_lshrrev_b32 v7, 5, v1")
    g("v_lshl_add_u32 v6, v7, 8, v6")
    g(f"v_add_u32 v6, {KV_L + 1024}, v6")
    g("v_add_u32 v7, 0x10000, v6")
    g("s_mov_b32 s54, 0x0000ffff"); g("s_mov_b32 s55, 0x0000ffff")
    g(f"v_mov_b32 v8, {KM_L}")
    g("ds_read_b64 v[10:11], v8")
    g("ds_read_b128 v[12:15], v8 offset:16")
    L = g.lab("SKQ")
    g("s_cmp_lt_u32 s3, 4"); g(f"s_cbranch_scc1 {L}")
    g("s_sub_u32 s46, s3, 4"); g("s_lshl_b32 s46, s46, 10")
    g("v_add_u32 v9, s46, v3")
    g(f"ds_read_b128 v[{QR}:{QR+3}], v9 offset:{QX_L}")
    g(f"{L}:")
    kread(g, 0); kread(g, 1)
    for r in range(16): g(f"v_mov_b32 v{VR+r}, 0x3f803f80")
    vread(g, 0)
    g("s_lshl_b32 s44, s40, 1"); g("s_add_u32 s44, s44, s3"); g("s_add_u32 s44, s44, 7")
    g("s_lshl_b32 s45, s3, 11"); g(f"s_add_u32 s45, s45, {KV_L}")
    g("s_lshl_b32 s50, s41, 16")
    g("s_and_b32 s46, s3, 1"); g("s_lshl_b32 s46, s46, 15"); g("s_add_u32 s50, s50, s46")
    g("s_lshr_b32 s46, s3, 2"); g("s_lshl_b32 s46, s46, 14"); g("s_add_u32 s50, s50, s46")
    g(f"s_add_u32 s50, s50, {WOF}")
    g("s_min_u32 s46, s3, 6"); g("s_mul_i32 s47, s41, 7"); g("s_add_u32 s53, s46, s47")
    g("s_lshl_b32 s51, s53, 15"); g(f"s_add_u32 s51, s51, {W1F}")
    g("s_waitcnt lgkmcnt(0)")
    g("v_max_f32 v12, v12, v13"); g("v_max_f32 v14, v14, v15"); g("v_max_f32 v12, v12, v14")
    g("v_mul_f32 v12, v12, v10")
    g("v_readfirstlane_b32 s62, v11")
    g(f"v_mov_b32 v13, {f32(3900.0)}")
    g("v_cmp_le_f32 vcc, v12, v13")
    g("s_cmp_eq_u64 vcc, -1")
    g("s_cbranch_scc0 B_SLOW")
    g(f"v_mfma_f32_32x32x16_bf16 v[{SA}:{SA+15}], v[{KR}:{KR+3}], v[{QR}:{QR+3}], 0")
    g(f"v_exp_f32 v{SA}, v{SA}"); g(f"v_exp_f32 v{SA+1}, v{SA+1}")
    assert PT <= 13
    wl = w_loads(g)
    for p in range(64):
        pre = None; ex = []
        if p < 8: ex.append(lambda p=p: kv_dma(g, p))
        if p == 5:
            def pre():
                g("s_waitcnt vmcnt(8)"); g("s_barrier")
                if not FWE: fw_set(g)
        if p == PT - CK:
            def f():
                L = g.lab("SKP")
                g("s_cmp_lg_u32 s3, 5"); g(f"s_cbranch_scc1 {L}")
                cnt4_addr(g, 8)
                g("buffer_load_dword v8, v9, s[24:27], 0 offen offset:32 sc1")
                g(f"{L}:")
            ex.append(f)
        if p == PT:
            def pre():
                L = g.lab("SKP")
                g("s_waitcnt vmcnt(0)")
                g("s_cmp_lg_u32 s3, 5"); g(f"s_cbranch_scc1 {L}")
                g("v_cmp_eq_u32 vcc, 64, v8")
                g("s_cmp_eq_u64 vcc, -1")
                g(f"s_cbranch_scc1 {L}")
                poll_bytes(g, 24, 32, "B_PW")
                g(f"{L}:")
                g("s_barrier")
        if p > PT and wl: ex.append(wl.pop(0))
        attn_tile(g, p, pre, ex)
    assert not wl
    g("s_branch B_OEPI")
    g("B_SLOW:")
    g("s_barrier")
    for i in range(8): kv_dma(g, i)
    g("s_waitcnt vmcnt(0)")
    g("s_barrier")
    if not FWE: fw_set(g)
    NM = 100
    g("v_mov_b32 v8, v4")
    g("v_mov_b32 v10, 0xff800000")
    g("s_mov_b32 s46, 0")
    g("B_S1:")
    g(f"ds_read_b128 v[{KR}:{KR+3}], v8")
    g("v_add_u32 v8, 2048, v8")
    g("s_waitcnt lgkmcnt(0)")
    g(f"v_mfma_f32_32x32x16_bf16 v[{SA}:{SA+15}], v[{KR}:{KR+3}], v[{QR}:{QR+3}], 0")
    for r in range(0, 16, 2):
        g(f"v_max3_f32 v10, v10, v{SA+r}, v{SA+r+1}")
    g("s_add_u32 s46, s46, 1"); g("s_cmp_lt_u32 s46, 64"); g("s_cbranch_scc1 B_S1")
    g("v_mov_b32 v11, v10")
    g("v_permlane32_swap_b32 v10, v11")
    g("v_max_f32 v10, v10, v11")
    for r in range(16):
        g(f"v_sub_f32 v{NM+r}, 0, v10")
        g(f"v_mov_b32 v{OR_+r}, 0")
    g("v_mov_b32 v8, v4"); g("v_mov_b32 v9, v6")
    g("s_mov_b32 s46, 0")
    g("B_S2:")
    g(f"ds_read_b128 v[{KR}:{KR+3}], v8")
    g("s_mov_b64 exec, s[54:55]")
    g(f"ds_read_b128 v[{VR}:{VR+3}], v9")
    g(f"ds_read_b128 v[{VR+4}:{VR+7}], v9 offset:512")
    g("s_mov_b64 exec, -1")
    g("v_add_u32 v8, 2048, v8"); g("v_add_u32 v9, 2048, v9")
    g("s_waitcnt lgkmcnt(0)")
    g(f"v_mfma_f32_32x32x16_bf16 v[{SA}:{SA+15}], v[{KR}:{KR+3}], v[{QR}:{QR+3}], v[{NM}:{NM+15}]")
    for r in range(16): g(f"v_exp_f32 v{SA+r}, v{SA+r}")
    for c in range(8): g(f"v_cvt_pk_bf16_f32 v{SA+c}, v{SA+2*c}, v{SA+2*c+1}")
    g(f"v_mfma_f32_32x32x16_bf16 v[{OR_}:{OR_+15}], v[{VR}:{VR+3}], v[{SA}:{SA+3}], v[{OR_}:{OR_+15}]")
    g(f"v_mfma_f32_32x32x16_bf16 v[{OR_}:{OR_+15}], v[{VR+4}:{VR+7}], v[{SA+4}:{SA+7}], v[{OR_}:{OR_+15}]")
    g("s_add_u32 s46, s46, 1"); g("s_cmp_lt_u32 s46, 64"); g("s_cbranch_scc1 B_S2")
    poll_bytes(g, 24, 32, "B_PW2")
    for f in w_loads(g): f()
    g("B_OEPI:")
    ST(7)
    g(f"v_rcp_f32 v8, v{OR_+8}")
    for r in range(8): g(f"v_mul_f32 v{OR_+r}, v{OR_+r}, v8")
    for c in range(4): g(f"v_cvt_pk_bf16_f32 v{12+c}, v{OR_+2*c}, v{OR_+2*c+1}")
    g("s_lshl_b32 s46, s41, 2")
    g("s_and_b32 s47, s3, 1"); g("s_lshl_b32 s47, s47, 1"); g("s_add_u32 s46, s46, s47")
    g("s_lshr_b32 s47, s3, 2"); g("s_add_u32 s46, s46, s47")
    g("s_lshl_b32 s46, s46, 10")
    g("s_bfe_u32 s47, s3, 0x10001"); g("s_lshl_b32 s47, s47, 15"); g("s_add_u32 s46, s46, s47")
    g("s_lshl_b32 s52, s40, 16")
    g("s_add_u32 s46, s46, s52")
    g(f"s_add_u32 s46, s46, {OF}")
    g("s_waitcnt vmcnt(0)")
    hstores(g, ["buffer_store_dwordx4 v[12:15], v3, s[36:39], s46 offen"], 84)
    for s in range(NW1A, 32):
        r = w1reg(s)
        g(f"buffer_load_dwordx4 v[{r}:{r+3}], v3, s[36:39], s51 offen offset:{(s&3)*1024}")
        if s & 3 == 3: g("s_add_u32 s51, s51, 4096")
    for r in range(4): g(f"v_mov_b32 v{64+r}, 0x3f803f80")
    def cs(s):
        r = w1reg(s)
        c = "0" if s == 0 else f"v[{CS}:{CS+15}]"
        g(f"v_mfma_f32_32x32x16_bf16 v[{CS}:{CS+15}], v[{r}:{r+3}], v[64:67], {c}")
    for s in range(NCS): cs(s)
    g(f"s_waitcnt vmcnt({32-NW1A})")
    set_flag(g, 0)
    for s in range(NCS, 32):
        if s == NW1A: g("s_waitcnt vmcnt(1)")
        cs(s)
    g("s_barrier")
    g("v_and_b32 v10, 7, v1"); g("v_lshlrev_b32 v10, 2, v10")
    g("s_lshl_b32 s48, s40, 3"); g("s_add_u32 s48, s48, s3"); g("s_lshl_b32 s48, s48, 7")
    g(f"s_add_u32 s48, s48, {FL}")
    poll_words(g, 10, "s48", "B_PO")
    ST(8)
    def dma8(base):
        g("s_lshl_b32 s46, s3, 12")
        g("s_add_u32 s47, s46, s52"); g(f"s_add_u32 s47, s47, {base}")
        g("s_mov_b32 m0, s46")
        g("s_nop 0")
        for i in range(4): g(f"buffer_load_dwordx4 v3, s[36:39], s47 offen offset:{i*1024} lds")
        g("s_add_u32 s46, s46, 32768"); g("s_add_u32 s47, s47, 32768")
        g("s_mov_b32 m0, s46")
        g("s_nop 0")
        for i in range(4): g(f"buffer_load_dwordx4 v3, s[36:39], s47 offen offset:{i*1024} lds")
    dma8(OF)
    g("s_mul_i32 s46, s41, 112"); g("s_mul_i32 s47, s3, 14"); g("s_add_u32 s46, s46, s47")
    g("s_lshl_b32 s46, s46, 11"); g(f"s_add_u32 s56, s46, {W2F}")
    g("s_add_u32 s47, s3, 5"); g("s_and_b32 s47, s47, 7")
    g(f"s_mul_i32 s47, s47, {NLF*1024}"); g(f"s_add_u32 s47, s47, {W2L}")
    g("s_mov_b32 s46, s56")
    for i in range(NLF):
        if i % 4 == 0:
            g("s_mov_b32 m0, s47")
            g("s_add_u32 s47, s47, 4096")
        g(f"buffer_load_dwordx4 v3, s[36:39], s46 offen offset:{(i&3)*1024} lds")
        if i % 4 == 3: g("s_add_u32 s46, s46, 4096")
    g("s_bfe_u32 s46, s3, 0x10001"); g("s_lshl_b32 s46, s46, 15")
    g("s_lshr_b32 s47, s3, 2"); g("s_lshl_b32 s47, s47, 14"); g("s_add_u32 s46, s46, s47")
    g("v_add_u32 v11, s46, v3")
    g("s_and_b32 s46, s3, 1")
    g("s_cmp_eq_u32 s46, 0")
    g("s_mov_b32 s54, 0x01000c0c"); g("s_mov_b32 s57, 0x03020c0c")
    g("s_cselect_b32 s57, s54, s57")
    for r in range(8): g(f"v_perm_b32 v{XR+r}, v{XR+r}, v{XR+r}, s57")
    g(f"s_waitcnt vmcnt({NLF})")
    g("s_barrier")
    ST(9)
    RING = [64, 24, 12, 4]; AC = OR_
    def bl(i): g(f"ds_read_b128 v[{RING[i%4]}:{RING[i%4]+3}], v11 offset:{i*1024}")
    for i in range(4): bl(i)
    for i in range(16):
        b = RING[i % 4]
        g(f"s_waitcnt lgkmcnt({min(3, 15-i)})")
        c = "0" if i == 0 else f"v[{AC}:{AC+15}]"
        g(f"v_mfma_f32_32x32x16_bf16 v[{AC}:{AC+15}], v[{WOR+4*i}:{WOR+4*i+3}], v[{b}:{b+3}], {c}")
        if i + 4 < 16: bl(i + 4)
    H = 100
    g("s_lshl_b32 s46, s3, 11"); g(f"s_add_u32 s46, s46, {EX_L}")
    g("v_lshlrev_b32 v12, 5, v1")
    g("v_add_u32 v13, s46, v12")
    g("s_xor_b32 s46, s46, 8192")
    g("v_add_u32 v12, s46, v12")
    g("s_cmp_ge_u32 s3, 4"); g("s_cbranch_scc1 B_X1")
    g(f"ds_write_b128 v13, v[{AC+8}:{AC+11}]"); g(f"ds_write_b128 v13, v[{AC+12}:{AC+15}] offset:16")
    for r in range(8): g(f"v_add_f32 v{H+r}, v{AC+r}, v{XR+r}")
    g("s_branch B_X2")
    g("B_X1:")
    g(f"ds_write_b128 v13, v[{AC}:{AC+3}]"); g(f"ds_write_b128 v13, v[{AC+4}:{AC+7}] offset:16")
    for r in range(8): g(f"v_add_f32 v{H+r}, v{AC+8+r}, v{XR+r}")
    g("B_X2:")
    g("s_waitcnt lgkmcnt(0)")
    g("s_barrier")
    g("ds_read_b128 v[84:87], v12"); g("ds_read_b128 v[88:91], v12 offset:16")
    g("s_waitcnt lgkmcnt(0)")
    for r in range(8): g(f"v_add_f32 v{H+r}, v{H+r}, v{84+r}")
    for c in range(4): g(f"v_cvt_pk_bf16_f32 v{12+c}, v{H+2*c}, v{H+2*c+1}")
    g(f"v_add_f32 v8, v{H}, v{H+1}")
    g(f"v_mul_f32 v9, v{H}, v{H}")
    g(f"v_fmac_f32 v9, v{H+1}, v{H+1}")
    for r in range(2, 8):
        g(f"v_add_f32 v8, v8, v{H+r}")
        g(f"v_fmac_f32 v9, v{H+r}, v{H+r}")
    g("v_mov_b32 v64, v8"); g("v_mov_b32 v65, v9")
    g("v_permlane32_swap_b32 v8, v64"); g("v_permlane32_swap_b32 v9, v65")
    g("v_add_f32 v8, v8, v64"); g("v_add_f32 v9, v9, v65")
    g("s_lshl_b32 s46, s41, 2")
    g("s_and_b32 s47, s3, 1"); g("s_lshl_b32 s47, s47, 1"); g("s_add_u32 s46, s46, s47")
    g("s_lshr_b32 s47, s3, 2"); g("s_add_u32 s46, s46, s47")
    g("s_lshl_b32 s46, s46, 10")
    g("s_bfe_u32 s47, s3, 0x10001"); g("s_lshl_b32 s47, s47, 15"); g("s_add_u32 s46, s46, s47")
    g("s_add_u32 s46, s46, s52")
    g(f"s_add_u32 s45, s46, {HN}")
    g("s_lshl_b32 s46, s68, 11")
    g("s_and_b32 s47, s3, 1"); g("s_lshl_b32 s47, s47, 10"); g("s_add_u32 s46, s46, s47")
    g("s_lshr_b32 s47, s3, 2"); g("s_lshl_b32 s47, s47, 9"); g("s_add_u32 s46, s46, s47")
    g("s_bfe_u32 s47, s3, 0x10001"); g("s_lshl_b32 s47, s47, 8"); g("s_add_u32 s46, s46, s47")
    g(f"s_add_u32 s46, s46, {STW}")
    g("v_lshlrev_b32 v11, 3, v1")
    g("v_and_b32 v2, 0xff, v11")
    hstores(g, ["buffer_store_dwordx4 v[12:15], v3, s[36:39], s45 offen",
                "buffer_store_dwordx2 v[8:9], v2, s[36:39], s46 offen"], 84)
    return dma8
```

```python
import os
from common import *
from kb_a import *
from kb_b import *
F2DBG = os.environ.get("F2DBG") == "1"
F1MODE = int(os.environ.get("F1M", "0"))
AC0 = 100; AC1 = 116; BI = 148
BR1 = [132, 136, 140, 144, 84, 88, 92, 96]
NRF = 28 - NLF
W2R = 164
def mish_ops(g, a, t0, t1):
    return [lambda: g(f"v_exp_f32 v{t0}, v{a}"),
            lambda: g(f"v_add_f32 v{t1}, 2.0, v{t0}"),
            lambda: g(f"v_fma_f32 v{t0}, v{t0}, v{t1}, 2.0"),
            lambda: g(f"v_rcp_f32 v{t0}, v{t0}"),
            lambda: g(f"v_fma_f32 v{t0}, v{t0}, s58, v2"),
            lambda: g(f"v_mul_f32 v{a}, v{a}, v{t0}")]
def mish_stream(g, acc, dst, va, vb, T=8):
    ops = []
    for grp in range(4):
        for i in range(4):
            r = 4*grp + i
            ops.append(lambda r=r, i=i: g(f"v_fma_f32 v{T+2*i}, v{vb}, v{CS+r}, v{BI+r}"))
        for i in range(4):
            r = 4*grp + i
            ops.append(lambda r=r, i=i: g(f"v_fma_f32 v{acc+r}, v{va}, v{acc+r}, v{T+2*i}"))
        per = [mish_ops(g, acc + 4*grp + i, T + 2*i, T + 2*i + 1) for i in range(4)]
        for k in range(6):
            for i in range(4): ops.append(per[i][k])
        for i in range(2):
            r = acc + 4*grp + 2*i
            ops.append(lambda r=r, d=dst + 2*grp + i: g(f"v_cvt_pk_bf16_f32 v{d}, v{r}, v{r+1}"))
    return ops

def ffn1(g, ST, dma8):
    srd(g, 20, 64, 1792*2)
    g("s_lshr_b32 s47, s53, 1"); g("s_lshl_b32 s47, s47, 7")
    g("v_lshrrev_b32 v4, 5, v1"); g("v_lshlrev_b32 v4, 4, v4")
    for gp in range(4):
        g(f"buffer_load_dwordx4 v[{BI+4*gp}:{BI+4*gp+3}], v4, s[20:23], s47 offen offset:{gp*32}")
    g("s_waitcnt vmcnt(4)")
    set_flag(g, 32)
    ST(10)
    g("s_add_u32 s49, s48, 32")
    poll_words(g, 10, "s49", "C_PH")
    dma8(HN)
    g("s_lshl_b32 s46, s40, 3"); g("s_add_u32 s46, s46, s3"); g("s_lshl_b32 s46, s46, 11")
    g(f"s_add_u32 s46, s46, {STW}")
    for q in range(4):
        g(f"buffer_load_dwordx2 v[{84+2*q}:{85+2*q}], v11, s[36:39], s46 offen offset:{q*512} sc1")
    g("s_and_b32 s47, s53, 1")
    g("s_cmp_eq_u32 s47, 0")
    g("s_mov_b32 s54, 0x01000c0c"); g("s_mov_b32 s57, 0x03020c0c")
    g("s_cselect_b32 s57, s54, s57")
    g(f"s_mov_b32 s58, {f32(-2.0/LOG2E)}")
    g(f"v_mov_b32 v2, {f32(1.0/LOG2E)}")
    g(f"s_mov_b32 s59, {f32(LOG2E)}")
    for r in range(16): g(f"v_perm_b32 v{BI+r}, v{BI+r}, v{BI+r}, s57")
    for r in range(16): g(f"v_mul_f32 v{BI+r}, s59, v{BI+r}")
    g("s_lshl_b32 s50, s40, 1"); g("s_mul_i32 s50, s50, 112")
    g("s_lshl_b32 s51, s53, 1"); g("s_add_u32 s50, s50, s51")
    g("s_lshl_b32 s50, s50, 10"); g(f"s_add_u32 s50, s50, {ACT}")
    g(f"s_add_u32 s51, s50, {112*1024}")
    g(f"s_add_u32 s60, s56, {NLF*1024}")
    g("s_waitcnt vmcnt(8)")
    g("s_waitcnt vmcnt(0)")
    g("v_add_f32 v84, v84, v86"); g("v_add_f32 v85, v85, v87")
    g("v_add_f32 v88, v88, v90"); g("v_add_f32 v89, v89, v91")
    g("v_add_f32 v84, v84, v88"); g("v_add_f32 v85, v85, v89")
    g("s_lshl_b32 s46, s3, 11"); g("s_xor_b32 s46, s46, 8192"); g(f"s_add_u32 s46, s46, {EX_L}")
    g("v_add_u32 v12, s46, v11")
    g("ds_write_b64 v12, v[84:85]")
    def w2load(i):
        r = W2R + 4*i
        g(f"buffer_load_dwordx4 v[{r}:{r+3}], v3, s[36:39], s60 offen offset:{(i&3)*1024}")
        if i & 3 == 3: g("s_add_u32 s60, s60, 4096")
    g("s_waitcnt lgkmcnt(0)")
    g("s_barrier")
    ST(11)
    g("s_cmp_eq_u32 s3, 7")
    g("s_cbranch_scc1 C_W7")
    F1M = F1MODE >= 1
    seq = [(s, rt) for s in range(32) for rt in range(2)]
    if F1M: seq = [(s, 0) for s in range(32)] + [(s, 1) for s in range(32)]
    NB = len(BR1)
    g("v_and_b32 v12, 31, v1"); g("v_lshlrev_b32 v12, 3, v12"); g(f"v_add_u32 v12, {EX_L}, v12")
    for rt in range(2):
        for q in range(8):
            g(f"ds_read_b64 v[{100+16*rt+2*q}:{101+16*rt+2*q}], v12 offset:{((q*2048) ^ 8192) + rt*256}")
        if rt == 0: g("s_waitcnt lgkmcnt(7)")
    def bload(i):
        s, rt = seq[i]; b = BR1[i % NB]
        g(f"ds_read_b128 v[{b}:{b+3}], v3 offset:{rt*32768 + s*1024}")
    g("s_waitcnt lgkmcnt(0)")
    for i in range(NB): bload(i)
    def stat_calc(z, va, vb):
        for st in (8, 4, 2):
            for q in range(0, st, 2):
                g(f"v_add_f32 v{z+q}, v{z+q}, v{z+q+st}")
                g(f"v_add_f32 v{z+q+1}, v{z+q+1}, v{z+q+st+1}")
        g(f"v_mul_f32 v{z}, {f32(1/512)}, v{z}")
        g(f"v_mul_f32 v{z+1}, {f32(1/512)}, v{z+1}")
        g(f"v_fma_f32 v{z+1}, -v{z}, v{z}, v{z+1}")
        g(f"v_max_f32 v{z+1}, 0, v{z+1}")
        g(f"v_add_f32 v{z+1}, {f32(1e-5)}, v{z+1}")
        g(f"v_rsq_f32 v{z+1}, v{z+1}")
        g(f"v_mul_f32 v{va}, s59, v{z+1}")
        g(f"v_mul_f32 v{vb}, v{z}, v{va}")
        g(f"v_sub_f32 v{vb}, 0, v{vb}")
    stat_calc(100, 4, 5); stat_calc(116, 6, 7)
    D0 = 16 if F1M else 84
    m0 = mish_stream(g, AC0, D0, 4, 5)
    per = (len(m0) + 29) // 30
    for i, (s, rt) in enumerate(seq):
        b = BR1[i % NB]; acc = AC0 if rt == 0 else AC1
        g(f"s_waitcnt lgkmcnt({min(NB-1, 63-i)})")
        c = "0" if s == 0 else f"v[{acc}:{acc+15}]"
        r = w1reg(s)
        g(f"v_mfma_f32_32x32x16_bf16 v[{acc}:{acc+15}], v[{r}:{r+3}], v[{b}:{b+3}], {c}")
        if i + NB < 64: bload(i + NB)
        if rt == 1 and s < NRF and F1MODE != 2: w2load(s)
        if F1M and rt == 1 and s >= 1:
            for _ in range(per):
                if m0: m0.pop(0)()
    for o in m0: o()
    for o in mish_stream(g, AC1, 92, 6, 7): o()
    hstores(g, [f"buffer_store_dwordx4 v[{D0}:{D0+3}], v3, s[36:39], s50 offen",
                f"buffer_store_dwordx4 v[{D0+4}:{D0+7}], v3, s[36:39], s50 offen offset:1024",
                "buffer_store_dwordx4 v[92:95], v3, s[36:39], s51 offen",
                "buffer_store_dwordx4 v[96:99], v3, s[36:39], s51 offen offset:1024"], 132)
    g("s_branch C_END")
    g("C_W7:")
    for i in range(NRF): w2load(i)
    g("C_END:")

def ffn2(g, ST):
    AC = 100; AL = 236; HR = 64; BW = 4; NB = 14; NA = 4
    SLAB_ROW = 272; SLAB_RT = 32*272; SLAB_SZ = 2*SLAB_RT
    g("s_waitcnt vmcnt(0)")
    set_flag(g, 64)
    ST(12)
    if F1MODE == 2:
        g("s_cmp_eq_u32 s3, 7"); g("s_cbranch_scc1 D_W7")
        for i in range(NRF):
            r = W2R + 4*i
            g(f"buffer_load_dwordx4 v[{r}:{r+3}], v3, s[36:39], s60 offen offset:{(i&3)*1024}")
            if i & 3 == 3: g("s_add_u32 s60, s60, 4096")
        g("D_W7:")
    g("v_lshrrev_b32 v60, 3, v0")
    g("v_and_b32 v61, 7, v0")
    g("v_lshrrev_b32 v62, 5, v60"); g("v_lshlrev_b32 v62, 15, v62")
    g("v_and_b32 v63, 31, v60"); g("v_lshl_add_u32 v62, v63, 4, v62")
    g("v_and_b32 v63, 1, v61"); g("v_lshl_add_u32 v62, v63, 9, v62")
    g("v_bfe_u32 v63, v61, 1, 1"); g("v_lshl_add_u32 v62, v63, 3, v62")
    g("v_lshrrev_b32 v63, 2, v61"); g("v_lshl_add_u32 v62, v63, 10, v62")
    g("s_lshl_b32 s46, s41, 12"); g("v_add_u32 v62, s46, v62")
    g(f"ds_read_b64 v[{HR}:{HR+1}], v62")
    g(f"ds_read_b64 v[{HR+2}:{HR+3}], v62 offset:2048")
    g("v_lshlrev_b32 v62, 10, v60"); g("v_lshl_add_u32 v62, v61, 4, v62")
    g("s_lshl_b32 s53, s41, 7"); g("s_add_u32 s53, s53, s52")
    srd(g, 20, 16, 0x200000)
    g("s_lshl_b32 s50, s40, 1"); g("s_mul_i32 s50, s50, 112")
    g("s_mul_i32 s51, s3, 14"); g("s_add_u32 s50, s50, s51")
    g("s_lshl_b32 s50, s50, 10"); g(f"s_add_u32 s50, s50, {ACT}")
    g(f"s_add_u32 s51, s50, {112*1024}")
    g("s_add_u32 s47, s3, 5"); g("s_and_b32 s47, s47, 7")
    g(f"s_mul_i32 s47, s47, {NLF*1024}"); g(f"s_add_u32 s47, s47, {W2L}")
    g("v_add_u32 v63, s47, v3")
    g("s_waitcnt lgkmcnt(0)")
    g("s_barrier")
    g("v_and_b32 v2, 7, v1"); g("v_lshlrev_b32 v2, 2, v2")
    g("s_add_u32 s46, s48, 64")
    poll_words(g, 2, "s46", "D_PA", vt=59)
    ST(13)
    seq = [(i, rt) for i in range(14) for rt in range(2)]
    issued = []
    def bload(k):
        i, rt = seq[k]; r = BW + 4*(k % NB); sp = 50 + rt
        g(f"buffer_load_dwordx4 v[{r}:{r+3}], v3, s[36:39], s{sp} offen offset:{(i&3)*1024}")
        issued.append(k)
        if i & 3 == 3: g(f"s_add_u32 s{sp}, s{sp}, 4096")
    for k in range(NB): bload(k)
    def areg(f): return AL + 4*(f % NA) if f < NLF else W2R + 4*(f - NLF)
    def lds_a(f):
        if f < NLF: g(f"ds_read_b128 v[{AL+4*(f%NA)}:{AL+4*(f%NA)+3}], v63 offset:{f*1024}")
    for f in range(NA): lds_a(f)
    nl = NA
    for k, (i, rt) in enumerate(seq):
        vm = len(issued) - 1 - issued.index(k)
        w = f"s_waitcnt vmcnt({vm})"
        if rt == 0 and 2*i < NLF:
            w += f" lgkmcnt({min(nl, NLF) - (2*i + 2)})"
        g(w)
        b = BW + 4*(k % NB)
        for e in range(2):
            a = areg(2*i + e); acc = AC + 32*rt + 16*e
            c = "0" if i == 0 else f"v[{acc}:{acc+15}]"
            g(f"v_mfma_f32_32x32x16_bf16 v[{acc}:{acc+15}], v[{a}:{a+3}], v[{b}:{b+3}], {c}")
        if k + NB < 28: bload(k + NB)
        if rt == 1:
            for f in (2*i + NA, 2*i + NA + 1):
                if f < NLF: lds_a(f); nl = f + 1
        if F2DBG and k == 0: ST(7)
    if F2DBG: ST(8)
    g("v_and_b32 v4, 31, v1")
    g(f"v_mul_u32_u24 v4, {SLAB_ROW}, v4")
    g("v_lshrrev_b32 v5, 5, v1")
    g("v_lshl_add_u32 v4, v5, 5, v4")
    g(f"s_mul_i32 s47, s3, {SLAB_SZ}")
    g("v_add_u32 v4, s47, v4")
    def slabw():
        for rt in range(2):
            a = AC + 32*rt
            for gp in range(4):
                g(f"ds_write_b128 v4, v[{a+4*gp}:{a+4*gp+3}] offset:{rt*SLAB_RT + gp*64}")
                g(f"ds_write_b128 v4, v[{a+16+4*gp}:{a+16+4*gp+3}] offset:{rt*SLAB_RT + gp*64+16}")
    g("s_cmp_ge_u32 s3, 4"); g("s_cbranch_scc1 D_SB")
    slabw()
    g("s_barrier")
    g("s_branch D_SC")
    g("D_SB:")
    g("s_barrier")
    if F2DBG: ST(9)
    slabw()
    g("D_SC:")
    g("v_and_b32 v5, 31, v60")
    g(f"v_mul_u32_u24 v5, {SLAB_ROW}, v5")
    g("v_lshl_add_u32 v5, v61, 5, v5")
    g("v_lshrrev_b32 v6, 5, v60")
    g(f"v_mul_u32_u24 v6, {SLAB_RT}, v6")
    g("v_add_u32 v5, v5, v6")
    g(f"v_add_u32 v6, {4*SLAB_SZ}, v5")
    for d in range(2):
        g(f"v_lshlrev_b32 v{48+2*d}, 16, v{HR+d}")
        g(f"v_and_b32 v{49+2*d}, 0xffff0000, v{HR+d}")
        g(f"v_lshlrev_b32 v{52+2*d}, 16, v{HR+2+d}")
        g(f"v_and_b32 v{53+2*d}, 0xffff0000, v{HR+2+d}")
    g("s_waitcnt lgkmcnt(0)")
    if F2DBG: ST(10)
    g("s_barrier")
    if F2DBG: ST(11)
    R = 100
    def rd(q):
        v = 5 if q < 4 else 6
        g(f"ds_read_b128 v[{R+8*q}:{R+8*q+3}], v{v} offset:{(q&3)*SLAB_SZ}")
        g(f"ds_read_b128 v[{R+8*q+4}:{R+8*q+7}], v{v} offset:{(q&3)*SLAB_SZ+16}")
    for q in range(7): rd(q)
    for q in range(8):
        if q == 0:
            g("s_waitcnt lgkmcnt(12)"); rd(7)
            g("s_waitcnt lgkmcnt(14)")
        else:
            g(f"s_waitcnt lgkmcnt({14-2*q})")
        for r in range(8):
            g(f"v_add_f32 v{48+r}, v{48+r}, v{R+8*q+r}")
    for rr in range(4):
        g(f"v_cvt_pk_bf16_f32 v{56+rr}, v{48+rr}, v{52+rr}")
    g("buffer_store_dwordx4 v[56:59], v62, s[20:23], s53 offen")
```

```python
import os
from common import *
from kb_a import *
from kb_b import *
F2DBG = os.environ.get("F2DBG") == "1"
PRE = os.environ.get("PRE", "1") == "1"
KBX = int(os.environ.get("KBX", "18"))
F1MODE = int(os.environ.get("F1M", "0"))
AC0 = 100; AC1 = 116; BI = 148
BR1 = [132, 136, 140, 144, 84, 88, 92, 96]
NRF = 28 - NLF
W2R = 164
def mish_ops(g, a, t0, t1):
    return [lambda: g(f"v_exp_f32 v{t0}, v{a}"),
            lambda: g(f"v_add_f32 v{t1}, 2.0, v{t0}"),
            lambda: g(f"v_fma_f32 v{t0}, v{t0}, v{t1}, 2.0"),
            lambda: g(f"v_rcp_f32 v{t0}, v{t0}"),
            lambda: g(f"v_fma_f32 v{t0}, v{t0}, s58, v2"),
            lambda: g(f"v_mul_f32 v{a}, v{a}, v{t0}")]
def mish_stream(g, acc, dst, va, vb, T=8):
    ops = []
    for grp in range(4):
        for i in range(4):
            r = 4*grp + i
            ops.append(lambda r=r, i=i: g(f"v_fma_f32 v{T+2*i}, v{vb}, v{CS+r}, v{BI+r}"))
        for i in range(4):
            r = 4*grp + i
            ops.append(lambda r=r, i=i: g(f"v_fma_f32 v{acc+r}, v{va}, v{acc+r}, v{T+2*i}"))
        per = [mish_ops(g, acc + 4*grp + i, T + 2*i, T + 2*i + 1) for i in range(4)]
        for k in range(6):
            for i in range(4): ops.append(per[i][k])
        for i in range(2):
            r = acc + 4*grp + 2*i
            ops.append(lambda r=r, d=dst + 2*grp + i: g(f"v_cvt_pk_bf16_f32 v{d}, v{r}, v{r+1}"))
    return ops

def ffn1(g, ST, dma8):
    srd(g, 20, 64, 1792*2)
    g("s_lshr_b32 s47, s53, 1"); g("s_lshl_b32 s47, s47, 7")
    g("v_lshrrev_b32 v4, 5, v1"); g("v_lshlrev_b32 v4, 4, v4")
    for gp in range(4):
        g(f"buffer_load_dwordx4 v[{BI+4*gp}:{BI+4*gp+3}], v4, s[20:23], s47 offen offset:{gp*32}")
    g("s_waitcnt vmcnt(4)")
    set_flag(g, 32)
    ST(10)
    g("s_add_u32 s49, s48, 32")
    poll_words(g, 10, "s49", "C_PH")
    dma8(HN)
    g("s_lshl_b32 s46, s40, 3"); g("s_add_u32 s46, s46, s3"); g("s_lshl_b32 s46, s46, 11")
    g(f"s_add_u32 s46, s46, {STW}")
    for q in range(4):
        g(f"buffer_load_dwordx2 v[{84+2*q}:{85+2*q}], v11, s[36:39], s46 offen offset:{q*512} sc1")
    g("s_and_b32 s47, s53, 1")
    g("s_cmp_eq_u32 s47, 0")
    g("s_mov_b32 s54, 0x01000c0c"); g("s_mov_b32 s57, 0x03020c0c")
    g("s_cselect_b32 s57, s54, s57")
    g(f"s_mov_b32 s58, {f32(-2.0/LOG2E)}")
    g(f"v_mov_b32 v2, {f32(1.0/LOG2E)}")
    g(f"s_mov_b32 s59, {f32(LOG2E)}")
    for r in range(16): g(f"v_perm_b32 v{BI+r}, v{BI+r}, v{BI+r}, s57")
    for r in range(16): g(f"v_mul_f32 v{BI+r}, s59, v{BI+r}")
    g("s_lshl_b32 s50, s40, 1"); g("s_mul_i32 s50, s50, 112")
    g("s_lshl_b32 s51, s53, 1"); g("s_add_u32 s50, s50, s51")
    g("s_lshl_b32 s50, s50, 10"); g(f"s_add_u32 s50, s50, {ACT}")
    g(f"s_add_u32 s51, s50, {112*1024}")
    g(f"s_add_u32 s60, s56, {NLF*1024}")
    g("s_waitcnt vmcnt(8)")
    g("s_waitcnt vmcnt(0)")
    g("v_add_f32 v84, v84, v86"); g("v_add_f32 v85, v85, v87")
    g("v_add_f32 v88, v88, v90"); g("v_add_f32 v89, v89, v91")
    g("v_add_f32 v84, v84, v88"); g("v_add_f32 v85, v85, v89")
    g("s_lshl_b32 s46, s3, 11"); g("s_xor_b32 s46, s46, 8192"); g(f"s_add_u32 s46, s46, {EX_L}")
    g("v_add_u32 v12, s46, v11")
    g("ds_write_b64 v12, v[84:85]")
    def w2load(i):
        r = W2R + 4*i
        g(f"buffer_load_dwordx4 v[{r}:{r+3}], v3, s[36:39], s60 offen offset:{(i&3)*1024}")
        if i & 3 == 3: g("s_add_u32 s60, s60, 4096")
    g("s_waitcnt lgkmcnt(0)")
    g("s_barrier")
    ST(11)
    g("s_cmp_eq_u32 s3, 7")
    g("s_cbranch_scc1 C_W7")
    F1M = F1MODE >= 1
    seq = [(s, rt) for s in range(32) for rt in range(2)]
    if F1M: seq = [(s, 0) for s in range(32)] + [(s, 1) for s in range(32)]
    NB = len(BR1)
    g("v_and_b32 v12, 31, v1"); g("v_lshlrev_b32 v12, 3, v12"); g(f"v_add_u32 v12, {EX_L}, v12")
    for rt in range(2):
        for q in range(8):
            g(f"ds_read_b64 v[{100+16*rt+2*q}:{101+16*rt+2*q}], v12 offset:{((q*2048) ^ 8192) + rt*256}")
        if rt == 0: g("s_waitcnt lgkmcnt(7)")
    def bload(i):
        s, rt = seq[i]; b = BR1[i % NB]
        g(f"ds_read_b128 v[{b}:{b+3}], v3 offset:{rt*32768 + s*1024}")
    g("s_waitcnt lgkmcnt(0)")
    for i in range(NB): bload(i)
    def stat_calc(z, va, vb):
        for st in (8, 4, 2):
            for q in range(0, st, 2):
                g(f"v_add_f32 v{z+q}, v{z+q}, v{z+q+st}")
                g(f"v_add_f32 v{z+q+1}, v{z+q+1}, v{z+q+st+1}")
        g(f"v_mul_f32 v{z}, {f32(1/512)}, v{z}")
        g(f"v_mul_f32 v{z+1}, {f32(1/512)}, v{z+1}")
        g(f"v_fma_f32 v{z+1}, -v{z}, v{z}, v{z+1}")
        g(f"v_max_f32 v{z+1}, 0, v{z+1}")
        g(f"v_add_f32 v{z+1}, {f32(1e-5)}, v{z+1}")
        g(f"v_rsq_f32 v{z+1}, v{z+1}")
        g(f"v_mul_f32 v{va}, s59, v{z+1}")
        g(f"v_mul_f32 v{vb}, v{z}, v{va}")
        g(f"v_sub_f32 v{vb}, 0, v{vb}")
    stat_calc(100, 4, 5); stat_calc(116, 6, 7)
    D0 = 16 if F1M else 84
    m0 = mish_stream(g, AC0, D0, 4, 5)
    per = (len(m0) + 29) // 30
    for i, (s, rt) in enumerate(seq):
        b = BR1[i % NB]; acc = AC0 if rt == 0 else AC1
        g(f"s_waitcnt lgkmcnt({min(NB-1, 63-i)})")
        c = "0" if s == 0 else f"v[{acc}:{acc+15}]"
        r = w1reg(s)
        g(f"v_mfma_f32_32x32x16_bf16 v[{acc}:{acc+15}], v[{r}:{r+3}], v[{b}:{b+3}], {c}")
        if i + NB < 64: bload(i + NB)
        if rt == 1 and s < NRF and F1MODE != 2: w2load(s)
        if F1M and rt == 1 and s >= 1:
            for _ in range(per):
                if m0: m0.pop(0)()
    for o in m0: o()
    for o in mish_stream(g, AC1, 92, 6, 7): o()
    hstores(g, [f"buffer_store_dwordx4 v[{D0}:{D0+3}], v3, s[36:39], s50 offen",
                f"buffer_store_dwordx4 v[{D0+4}:{D0+7}], v3, s[36:39], s50 offen offset:1024",
                "buffer_store_dwordx4 v[92:95], v3, s[36:39], s51 offen",
                "buffer_store_dwordx4 v[96:99], v3, s[36:39], s51 offen offset:1024"], 132)
    g("s_branch C_END")
    g("C_W7:")
    for i in range(NRF): w2load(i)
    g("C_END:")

def ffn2(g, ST):
    AC = 100; AL = 236; HR = 64; BW = 4; NB = 14; NA = 4
    SLAB_ROW = 272; SLAB_RT = 32*272; SLAB_SZ = 2*SLAB_RT
    g("s_waitcnt vmcnt(0)")
    set_flag(g, 64)
    ST(12)
    if F1MODE == 2:
        g("s_cmp_eq_u32 s3, 7"); g("s_cbranch_scc1 D_W7")
        for i in range(NRF):
            r = W2R + 4*i
            g(f"buffer_load_dwordx4 v[{r}:{r+3}], v3, s[36:39], s60 offen offset:{(i&3)*1024}")
            if i & 3 == 3: g("s_add_u32 s60, s60, 4096")
        g("D_W7:")
    g("v_lshrrev_b32 v60, 3, v0")
    g("v_and_b32 v61, 7, v0")
    g("v_lshrrev_b32 v62, 5, v60"); g("v_lshlrev_b32 v62, 15, v62")
    g("v_and_b32 v63, 31, v60"); g("v_lshl_add_u32 v62, v63, 4, v62")
    g("v_and_b32 v63, 1, v61"); g("v_lshl_add_u32 v62, v63, 9, v62")
    g("v_bfe_u32 v63, v61, 1, 1"); g("v_lshl_add_u32 v62, v63, 3, v62")
    g("v_lshrrev_b32 v63, 2, v61"); g("v_lshl_add_u32 v62, v63, 10, v62")
    g("s_lshl_b32 s46, s41, 12"); g("v_add_u32 v62, s46, v62")
    g(f"ds_read_b64 v[{HR}:{HR+1}], v62")
    g(f"ds_read_b64 v[{HR+2}:{HR+3}], v62 offset:2048")
    g("v_lshlrev_b32 v62, 10, v60"); g("v_lshl_add_u32 v62, v61, 4, v62")
    g("s_lshl_b32 s53, s41, 7"); g("s_add_u32 s53, s53, s52")
    srd(g, 20, 16, 0x200000)
    g("s_lshl_b32 s50, s40, 1"); g("s_mul_i32 s50, s50, 112")
    g("s_mul_i32 s51, s3, 14"); g("s_add_u32 s50, s50, s51")
    g("s_lshl_b32 s50, s50, 10"); g(f"s_add_u32 s50, s50, {ACT}")
    g(f"s_add_u32 s51, s50, {112*1024}")
    g("s_add_u32 s47, s3, 5"); g("s_and_b32 s47, s47, 7")
    g(f"s_mul_i32 s47, s47, {NLF*1024}"); g(f"s_add_u32 s47, s47, {W2L}")
    g("v_add_u32 v63, s47, v3")
    g("s_waitcnt lgkmcnt(0)")
    g("s_barrier")
    g("v_and_b32 v2, 7, v1"); g("v_lshlrev_b32 v2, 2, v2")
    g("s_add_u32 s46, s48, 64")
    poll_words(g, 2, "s46", "D_PA", vt=59)
    ST(13)
    seq = [(i, rt) for i in range(14) for rt in range(2)]
    issued = []
    def bload(k):
        i, rt = seq[k]; r = BW + 4*(k % NB); sp = 50 + rt
        g(f"buffer_load_dwordx4 v[{r}:{r+3}], v3, s[36:39], s{sp} offen offset:{(i&3)*1024}")
        issued.append(k)
        if i & 3 == 3: g(f"s_add_u32 s{sp}, s{sp}, 4096")
    for k in range(NB): bload(k)
    def areg(f): return AL + 4*(f % NA) if f < NLF else W2R + 4*(f - NLF)
    def lds_a(f):
        if f < NLF: g(f"ds_read_b128 v[{AL+4*(f%NA)}:{AL+4*(f%NA)+3}], v63 offset:{f*1024}")
    for f in range(NA): lds_a(f)
    nl = NA
    for k, (i, rt) in enumerate(seq):
        vm = len(issued) - 1 - issued.index(k)
        w = f"s_waitcnt vmcnt({vm})"
        if PRE and k == KBX:
            assert KBX >= NLF
            g("s_cmp_lt_u32 s3, 4"); g("s_cbranch_scc1 D_BX"); g("s_barrier"); g("D_BX:")
        if rt == 0 and 2*i < NLF:
            w += f" lgkmcnt({min(nl, NLF) - (2*i + 2)})"
        g(w)
        b = BW + 4*(k % NB)
        for e in range(2):
            a = areg(2*i + e); acc = AC + 32*rt + 16*e
            c = "0" if i == 0 else f"v[{acc}:{acc+15}]"
            g(f"v_mfma_f32_32x32x16_bf16 v[{acc}:{acc+15}], v[{a}:{a+3}], v[{b}:{b+3}], {c}")
        if k + NB < 28: bload(k + NB)
        if rt == 1:
            for f in (2*i + NA, 2*i + NA + 1):
                if f < NLF: lds_a(f); nl = f + 1
        if F2DBG and k == 0: ST(7)
    if F2DBG: ST(8)
    g("v_and_b32 v4, 31, v1")
    g(f"v_mul_u32_u24 v4, {SLAB_ROW}, v4")
    g("v_lshrrev_b32 v5, 5, v1")
    g("v_lshl_add_u32 v4, v5, 5, v4")
    g(f"s_mul_i32 s47, s3, {SLAB_SZ}")
    g("v_add_u32 v4, s47, v4")
    def slabw():
        for rt in range(2):
            a = AC + 32*rt
            for gp in range(4):
                g(f"ds_write_b128 v4, v[{a+4*gp}:{a+4*gp+3}] offset:{rt*SLAB_RT + gp*64}")
                g(f"ds_write_b128 v4, v[{a+16+4*gp}:{a+16+4*gp+3}] offset:{rt*SLAB_RT + gp*64+16}")
    if PRE:
        g("v_and_b32 v5, 31, v60")
        g(f"v_mul_u32_u24 v5, {SLAB_ROW}, v5")
        g("v_lshl_add_u32 v5, v61, 5, v5")
        g("v_lshrrev_b32 v6, 5, v60")
        g(f"v_mul_u32_u24 v6, {SLAB_RT}, v6")
        g("v_add_u32 v5, v5, v6")
        g(f"v_add_u32 v6, {4*SLAB_SZ}, v5")
        slabw()
        g("s_cmp_ge_u32 s3, 4"); g("s_cbranch_scc1 D_SC")
        g("s_waitcnt lgkmcnt(0)")
        g("s_barrier")
        R = 100
        bad = 0
        for half in range(2):
            u = half
            for q in range(4):
                for h in range(2):
                    r = R + 32*u + 8*q + 4*h
                    g(f"ds_read_b128 v[{r}:{r+3}], v5 offset:{q*SLAB_SZ + u*SLAB_RT + 16*h}")
            if u == 1:
                for q in range(1, 4):
                    g(f"s_waitcnt lgkmcnt({8 + 6 - 2*q})")
                    for r in range(8): g(f"v_add_f32 v{R+r}, v{R+r}, v{R+8*q+r}")
        g(f"ds_write_b128 v5, v[{R}:{R+3}]"); g(f"ds_write_b128 v5, v[{R+4}:{R+7}] offset:16")
        for q in range(1, 4):
            g(f"s_waitcnt lgkmcnt({2 + 6 - 2*q})")
            for r in range(8): g(f"v_add_f32 v{R+32+r}, v{R+32+r}, v{R+32+8*q+r}")
        g(f"ds_write_b128 v5, v[{R+32}:{R+35}] offset:{SLAB_RT}"); g(f"ds_write_b128 v5, v[{R+36}:{R+39}] offset:{SLAB_RT+16}")
        g("D_SC:")
        for d in range(2):
            g(f"v_lshlrev_b32 v{48+2*d}, 16, v{HR+d}")
            g(f"v_and_b32 v{49+2*d}, 0xffff0000, v{HR+d}")
            g(f"v_lshlrev_b32 v{52+2*d}, 16, v{HR+2+d}")
            g(f"v_and_b32 v{53+2*d}, 0xffff0000, v{HR+2+d}")
        g("s_waitcnt lgkmcnt(0)")
        if F2DBG: ST(10)
        g("s_barrier")
        if F2DBG: ST(11)
        qs = [0, 4, 5, 6, 7]
        for n, q in enumerate(qs):
            v = 5 if q < 4 else 6
            g(f"ds_read_b128 v[{R+8*n}:{R+8*n+3}], v{v} offset:{(q&3)*SLAB_SZ}")
            g(f"ds_read_b128 v[{R+8*n+4}:{R+8*n+7}], v{v} offset:{(q&3)*SLAB_SZ+16}")
        for n in range(5):
            g(f"s_waitcnt lgkmcnt({8-2*n})")
            for r in range(8): g(f"v_add_f32 v{48+r}, v{48+r}, v{R+8*n+r}")
    else:
        g("s_cmp_ge_u32 s3, 4"); g("s_cbranch_scc1 D_SB")
        slabw()
        g("s_barrier")
        g("s_branch D_SC")
        g("D_SB:")
        g("s_barrier")
        if F2DBG: ST(9)
        slabw()
        g("D_SC:")
        g("v_and_b32 v5, 31, v60")
        g(f"v_mul_u32_u24 v5, {SLAB_ROW}, v5")
        g("v_lshl_add_u32 v5, v61, 5, v5")
        g("v_lshrrev_b32 v6, 5, v60")
        g(f"v_mul_u32_u24 v6, {SLAB_RT}, v6")
        g("v_add_u32 v5, v5, v6")
        g(f"v_add_u32 v6, {4*SLAB_SZ}, v5")
        for d in range(2):
            g(f"v_lshlrev_b32 v{48+2*d}, 16, v{HR+d}")
            g(f"v_and_b32 v{49+2*d}, 0xffff0000, v{HR+d}")
            g(f"v_lshlrev_b32 v{52+2*d}, 16, v{HR+2+d}")
            g(f"v_and_b32 v{53+2*d}, 0xffff0000, v{HR+2+d}")
        g("s_waitcnt lgkmcnt(0)")
        if F2DBG: ST(10)
        g("s_barrier")
        if F2DBG: ST(11)
        R = 100
        def rd(q):
            v = 5 if q < 4 else 6
            g(f"ds_read_b128 v[{R+8*q}:{R+8*q+3}], v{v} offset:{(q&3)*SLAB_SZ}")
            g(f"ds_read_b128 v[{R+8*q+4}:{R+8*q+7}], v{v} offset:{(q&3)*SLAB_SZ+16}")
        for q in range(7): rd(q)
        for q in range(8):
            if q == 0:
                g("s_waitcnt lgkmcnt(12)"); rd(7)
                g("s_waitcnt lgkmcnt(14)")
            else:
                g(f"s_waitcnt lgkmcnt({14-2*q})")
            for r in range(8):
                g(f"v_add_f32 v{48+r}, v{48+r}, v{R+8*q+r}")
    for rr in range(4):
        g(f"v_cvt_pk_bf16_f32 v{56+rr}, v{48+rr}, v{52+rr}")
    g("buffer_store_dwordx4 v[56:59], v62, s[20:23], s53 offen")
```

```python
import os
from common import *
from kb_a import *
from kb_b import *
F2DBG = os.environ.get("F2DBG") == "1"
PRE = os.environ.get("PRE", "1") == "1"
KBX = int(os.environ.get("KBX", "18"))
EARLY = int(os.environ.get("EARLY", "4")) if PRE else 0
F1MODE = int(os.environ.get("F1M", "0"))
AC0 = 100; AC1 = 116; BI = 148
BR1 = [132, 136, 140, 144, 84, 88, 92, 96]
NRF = 28 - NLF
W2R = 164
def mish_ops(g, a, t0, t1):
    return [lambda: g(f"v_exp_f32 v{t0}, v{a}"),
            lambda: g(f"v_add_f32 v{t1}, 2.0, v{t0}"),
            lambda: g(f"v_fma_f32 v{t0}, v{t0}, v{t1}, 2.0"),
            lambda: g(f"v_rcp_f32 v{t0}, v{t0}"),
            lambda: g(f"v_fma_f32 v{t0}, v{t0}, s58, v2"),
            lambda: g(f"v_mul_f32 v{a}, v{a}, v{t0}")]
def mish_stream(g, acc, dst, va, vb, T=8):
    ops = []
    for grp in range(4):
        for i in range(4):
            r = 4*grp + i
            ops.append(lambda r=r, i=i: g(f"v_fma_f32 v{T+2*i}, v{vb}, v{CS+r}, v{BI+r}"))
        for i in range(4):
            r = 4*grp + i
            ops.append(lambda r=r, i=i: g(f"v_fma_f32 v{acc+r}, v{va}, v{acc+r}, v{T+2*i}"))
        per = [mish_ops(g, acc + 4*grp + i, T + 2*i, T + 2*i + 1) for i in range(4)]
        for k in range(6):
            for i in range(4): ops.append(per[i][k])
        for i in range(2):
            r = acc + 4*grp + 2*i
            ops.append(lambda r=r, d=dst + 2*grp + i: g(f"v_cvt_pk_bf16_f32 v{d}, v{r}, v{r+1}"))
    return ops

def ffn1(g, ST, dma8):
    srd(g, 20, 64, 1792*2)
    g("s_lshr_b32 s47, s53, 1"); g("s_lshl_b32 s47, s47, 7")
    g("v_lshrrev_b32 v4, 5, v1"); g("v_lshlrev_b32 v4, 4, v4")
    for gp in range(4):
        g(f"buffer_load_dwordx4 v[{BI+4*gp}:{BI+4*gp+3}], v4, s[20:23], s47 offen offset:{gp*32}")
    g("s_waitcnt vmcnt(4)")
    set_flag(g, 32)
    ST(10)
    g("s_add_u32 s49, s48, 32")
    poll_words(g, 10, "s49", "C_PH")
    dma8(HN)
    g("s_lshl_b32 s46, s40, 3"); g("s_add_u32 s46, s46, s3"); g("s_lshl_b32 s46, s46, 11")
    g(f"s_add_u32 s46, s46, {STW}")
    for q in range(4):
        g(f"buffer_load_dwordx2 v[{84+2*q}:{85+2*q}], v11, s[36:39], s46 offen offset:{q*512} sc1")
    g("s_and_b32 s47, s53, 1")
    g("s_cmp_eq_u32 s47, 0")
    g("s_mov_b32 s54, 0x01000c0c"); g("s_mov_b32 s57, 0x03020c0c")
    g("s_cselect_b32 s57, s54, s57")
    g(f"s_mov_b32 s58, {f32(-2.0/LOG2E)}")
    g(f"v_mov_b32 v2, {f32(1.0/LOG2E)}")
    g(f"s_mov_b32 s59, {f32(LOG2E)}")
    for r in range(16): g(f"v_perm_b32 v{BI+r}, v{BI+r}, v{BI+r}, s57")
    for r in range(16): g(f"v_mul_f32 v{BI+r}, s59, v{BI+r}")
    g("s_lshl_b32 s50, s40, 1"); g("s_mul_i32 s50, s50, 112")
    g("s_lshl_b32 s51, s53, 1"); g("s_add_u32 s50, s50, s51")
    g("s_lshl_b32 s50, s50, 10"); g(f"s_add_u32 s50, s50, {ACT}")
    g(f"s_add_u32 s51, s50, {112*1024}")
    g(f"s_add_u32 s60, s56, {NLF*1024}")
    g("s_waitcnt vmcnt(8)")
    g("s_waitcnt vmcnt(0)")
    g("v_add_f32 v84, v84, v86"); g("v_add_f32 v85, v85, v87")
    g("v_add_f32 v88, v88, v90"); g("v_add_f32 v89, v89, v91")
    g("v_add_f32 v84, v84, v88"); g("v_add_f32 v85, v85, v89")
    g("s_lshl_b32 s46, s3, 11"); g("s_xor_b32 s46, s46, 8192"); g(f"s_add_u32 s46, s46, {EX_L}")
    g("v_add_u32 v12, s46, v11")
    g("ds_write_b64 v12, v[84:85]")
    def w2load(i):
        r = W2R + 4*i
        g(f"buffer_load_dwordx4 v[{r}:{r+3}], v3, s[36:39], s60 offen offset:{(i&3)*1024}")
        if i & 3 == 3: g("s_add_u32 s60, s60, 4096")
    g("s_waitcnt lgkmcnt(0)")
    g("s_barrier")
    ST(11)
    g("s_cmp_eq_u32 s3, 7")
    g("s_cbranch_scc1 C_W7")
    F1M = F1MODE >= 1
    seq = [(s, rt) for s in range(32) for rt in range(2)]
    if F1M: seq = [(s, 0) for s in range(32)] + [(s, 1) for s in range(32)]
    NB = len(BR1)
    g("v_and_b32 v12, 31, v1"); g("v_lshlrev_b32 v12, 3, v12"); g(f"v_add_u32 v12, {EX_L}, v12")
    for rt in range(2):
        for q in range(8):
            g(f"ds_read_b64 v[{100+16*rt+2*q}:{101+16*rt+2*q}], v12 offset:{((q*2048) ^ 8192) + rt*256}")
        if rt == 0: g("s_waitcnt lgkmcnt(7)")
    def bload(i):
        s, rt = seq[i]; b = BR1[i % NB]
        g(f"ds_read_b128 v[{b}:{b+3}], v3 offset:{rt*32768 + s*1024}")
    g("s_waitcnt lgkmcnt(0)")
    for i in range(NB): bload(i)
    def stat_calc(z, va, vb):
        for st in (8, 4, 2):
            for q in range(0, st, 2):
                g(f"v_add_f32 v{z+q}, v{z+q}, v{z+q+st}")
                g(f"v_add_f32 v{z+q+1}, v{z+q+1}, v{z+q+st+1}")
        g(f"v_mul_f32 v{z}, {f32(1/512)}, v{z}")
        g(f"v_mul_f32 v{z+1}, {f32(1/512)}, v{z+1}")
        g(f"v_fma_f32 v{z+1}, -v{z}, v{z}, v{z+1}")
        g(f"v_max_f32 v{z+1}, 0, v{z+1}")
        g(f"v_add_f32 v{z+1}, {f32(1e-5)}, v{z+1}")
        g(f"v_rsq_f32 v{z+1}, v{z+1}")
        g(f"v_mul_f32 v{va}, s59, v{z+1}")
        g(f"v_mul_f32 v{vb}, v{z}, v{va}")
        g(f"v_sub_f32 v{vb}, 0, v{vb}")
    stat_calc(100, 4, 5); stat_calc(116, 6, 7)
    D0 = 16 if F1M else 84
    m0 = mish_stream(g, AC0, D0, 4, 5)
    per = (len(m0) + 29) // 30
    for i, (s, rt) in enumerate(seq):
        b = BR1[i % NB]; acc = AC0 if rt == 0 else AC1
        g(f"s_waitcnt lgkmcnt({min(NB-1, 63-i)})")
        c = "0" if s == 0 else f"v[{acc}:{acc+15}]"
        r = w1reg(s)
        g(f"v_mfma_f32_32x32x16_bf16 v[{acc}:{acc+15}], v[{r}:{r+3}], v[{b}:{b+3}], {c}")
        if i + NB < 64: bload(i + NB)
        if rt == 1 and s < NRF and F1MODE != 2: w2load(s)
        if F1M and rt == 1 and s >= 1:
            for _ in range(per):
                if m0: m0.pop(0)()
    for o in m0: o()
    for o in mish_stream(g, AC1, 92, 6, 7): o()
    hstores(g, [f"buffer_store_dwordx4 v[{D0}:{D0+3}], v3, s[36:39], s50 offen",
                f"buffer_store_dwordx4 v[{D0+4}:{D0+7}], v3, s[36:39], s50 offen offset:1024",
                "buffer_store_dwordx4 v[92:95], v3, s[36:39], s51 offen",
                "buffer_store_dwordx4 v[96:99], v3, s[36:39], s51 offen offset:1024"], 132)
    g("s_branch C_END")
    g("C_W7:")
    for i in range(NRF): w2load(i)
    g("C_END:")

def ffn2(g, ST):
    AC = 100; AL = 236; HR = 64; BW = 4; NB = 14; NA = 4
    SLAB_ROW = 272; SLAB_RT = 32*272; SLAB_SZ = 2*SLAB_RT
    g("s_waitcnt vmcnt(0)")
    set_flag(g, 64)
    ST(12)
    if F1MODE == 2:
        g("s_cmp_eq_u32 s3, 7"); g("s_cbranch_scc1 D_W7")
        for i in range(NRF):
            r = W2R + 4*i
            g(f"buffer_load_dwordx4 v[{r}:{r+3}], v3, s[36:39], s60 offen offset:{(i&3)*1024}")
            if i & 3 == 3: g("s_add_u32 s60, s60, 4096")
        g("D_W7:")
    g("v_lshrrev_b32 v60, 3, v0")
    g("v_and_b32 v61, 7, v0")
    g("v_lshrrev_b32 v62, 5, v60"); g("v_lshlrev_b32 v62, 15, v62")
    g("v_and_b32 v63, 31, v60"); g("v_lshl_add_u32 v62, v63, 4, v62")
    g("v_and_b32 v63, 1, v61"); g("v_lshl_add_u32 v62, v63, 9, v62")
    g("v_bfe_u32 v63, v61, 1, 1"); g("v_lshl_add_u32 v62, v63, 3, v62")
    g("v_lshrrev_b32 v63, 2, v61"); g("v_lshl_add_u32 v62, v63, 10, v62")
    g("s_lshl_b32 s46, s41, 12"); g("v_add_u32 v62, s46, v62")
    g(f"ds_read_b64 v[{HR}:{HR+1}], v62")
    g(f"ds_read_b64 v[{HR+2}:{HR+3}], v62 offset:2048")
    g("v_lshlrev_b32 v62, 10, v60"); g("v_lshl_add_u32 v62, v61, 4, v62")
    g("s_lshl_b32 s53, s41, 7"); g("s_add_u32 s53, s53, s52")
    srd(g, 20, 16, 0x200000)
    g("s_lshl_b32 s50, s40, 1"); g("s_mul_i32 s50, s50, 112")
    g("s_mul_i32 s51, s3, 14"); g("s_add_u32 s50, s50, s51")
    g("s_lshl_b32 s50, s50, 10"); g(f"s_add_u32 s50, s50, {ACT}")
    g(f"s_add_u32 s51, s50, {112*1024}")
    g("s_add_u32 s47, s3, 5"); g("s_and_b32 s47, s47, 7")
    g(f"s_mul_i32 s47, s47, {NLF*1024}"); g(f"s_add_u32 s47, s47, {W2L}")
    g("v_add_u32 v63, s47, v3")
    g("s_waitcnt lgkmcnt(0)")
    g("s_barrier")
    g("v_and_b32 v2, 7, v1"); g("v_lshlrev_b32 v2, 2, v2")
    g("s_add_u32 s46, s48, 64")
    poll_words(g, 2, "s46", "D_PA", vt=59)
    ST(13)
    seq = [(i, rt) for i in range(14) for rt in range(2)]
    if EARLY:
        n0 = 14 - EARLY
        seq = [(i, rt) for i in range(n0) for rt in range(2)] + [(i, 0) for i in range(n0, 14)] + [(i, 1) for i in range(n0, 14)]
    def slab_addr():
        g("v_and_b32 v4, 31, v1")
        g(f"v_mul_u32_u24 v4, {SLAB_ROW}, v4")
        g("v_lshrrev_b32 v5, 5, v1")
        g("v_lshl_add_u32 v4, v5, 5, v4")
        g(f"s_mul_i32 s47, s3, {SLAB_SZ}")
        g("v_add_u32 v4, s47, v4")
    def slabw(rts=(0, 1)):
        for rt in rts:
            a = AC + 32*rt
            for gp in range(4):
                g(f"ds_write_b128 v4, v[{a+4*gp}:{a+4*gp+3}] offset:{rt*SLAB_RT + gp*64}")
                g(f"ds_write_b128 v4, v[{a+16+4*gp}:{a+16+4*gp+3}] offset:{rt*SLAB_RT + gp*64+16}")
    issued = []
    def bload(k):
        i, rt = seq[k]; r = BW + 4*(k % NB); sp = 50 + rt
        g(f"buffer_load_dwordx4 v[{r}:{r+3}], v3, s[36:39], s{sp} offen offset:{(i&3)*1024}")
        issued.append(k)
        if i & 3 == 3: g(f"s_add_u32 s{sp}, s{sp}, 4096")
    for k in range(NB): bload(k)
    def areg(f): return AL + 4*(f % NA) if f < NLF else W2R + 4*(f - NLF)
    def lds_a(f):
        if f < NLF: g(f"ds_read_b128 v[{AL+4*(f%NA)}:{AL+4*(f%NA)+3}], v63 offset:{f*1024}")
    for f in range(NA): lds_a(f)
    nl = NA
    for k, (i, rt) in enumerate(seq):
        vm = len(issued) - 1 - issued.index(k)
        w = f"s_waitcnt vmcnt({vm})"
        if PRE and k == KBX:
            assert KBX >= NLF
            g("s_cmp_lt_u32 s3, 4"); g("s_cbranch_scc1 D_BX"); g("s_barrier"); g("D_BX:")
        if rt == 0 and 2*i < NLF:
            w += f" lgkmcnt({min(nl, NLF) - (2*i + 2)})"
        g(w)
        b = BW + 4*(k % NB)
        for e in range(2):
            a = areg(2*i + e); acc = AC + 32*rt + 16*e
            c = "0" if i == 0 else f"v[{acc}:{acc+15}]"
            g(f"v_mfma_f32_32x32x16_bf16 v[{acc}:{acc+15}], v[{a}:{a+3}], v[{b}:{b+3}], {c}")
        if k + NB < 28: bload(k + NB)
        if rt == 1:
            for f in (2*i + NA, 2*i + NA + 1):
                if f < NLF: lds_a(f); nl = f + 1
        if EARLY and k == 15: slab_addr()
        if EARLY and k == 27 - EARLY + 2:
            assert k > KBX and k > 15
            g("s_nop 7"); g("s_nop 7")
            slabw((0,))
        if F2DBG and k == 0: ST(7)
    if F2DBG: ST(8)
    if not EARLY: slab_addr()
    if PRE:
        g("v_and_b32 v5, 31, v60")
        g(f"v_mul_u32_u24 v5, {SLAB_ROW}, v5")
        g("v_lshl_add_u32 v5, v61, 5, v5")
        g("v_lshrrev_b32 v6, 5, v60")
        g(f"v_mul_u32_u24 v6, {SLAB_RT}, v6")
        g("v_add_u32 v5, v5, v6")
        g(f"v_add_u32 v6, {4*SLAB_SZ}, v5")
        if EARLY: g("s_nop 7"); g("s_nop 3")
        slabw((1,) if EARLY else (0, 1))
        g("s_cmp_ge_u32 s3, 4"); g("s_cbranch_scc1 D_SC")
        g("s_waitcnt lgkmcnt(0)")
        g("s_barrier")
        R = 100
        bad = 0
        for half in range(2):
            u = half
            for q in range(4):
                for h in range(2):
                    r = R + 32*u + 8*q + 4*h
                    g(f"ds_read_b128 v[{r}:{r+3}], v5 offset:{q*SLAB_SZ + u*SLAB_RT + 16*h}")
            if u == 1:
                for q in range(1, 4):
                    g(f"s_waitcnt lgkmcnt({8 + 6 - 2*q})")
                    for r in range(8): g(f"v_add_f32 v{R+r}, v{R+r}, v{R+8*q+r}")
        g(f"ds_write_b128 v5, v[{R}:{R+3}]"); g(f"ds_write_b128 v5, v[{R+4}:{R+7}] offset:16")
        for q in range(1, 4):
            g(f"s_waitcnt lgkmcnt({2 + 6 - 2*q})")
            for r in range(8): g(f"v_add_f32 v{R+32+r}, v{R+32+r}, v{R+32+8*q+r}")
        g(f"ds_write_b128 v5, v[{R+32}:{R+35}] offset:{SLAB_RT}"); g(f"ds_write_b128 v5, v[{R+36}:{R+39}] offset:{SLAB_RT+16}")
        g("D_SC:")
        for d in range(2):
            g(f"v_lshlrev_b32 v{48+2*d}, 16, v{HR+d}")
            g(f"v_and_b32 v{49+2*d}, 0xffff0000, v{HR+d}")
            g(f"v_lshlrev_b32 v{52+2*d}, 16, v{HR+2+d}")
            g(f"v_and_b32 v{53+2*d}, 0xffff0000, v{HR+2+d}")
        g("s_waitcnt lgkmcnt(0)")
        if F2DBG: ST(10)
        g("s_barrier")
        if F2DBG: ST(11)
        qs = [0, 4, 5, 6, 7]
        for n, q in enumerate(qs):
            v = 5 if q < 4 else 6
            g(f"ds_read_b128 v[{R+8*n}:{R+8*n+3}], v{v} offset:{(q&3)*SLAB_SZ}")
            g(f"ds_read_b128 v[{R+8*n+4}:{R+8*n+7}], v{v} offset:{(q&3)*SLAB_SZ+16}")
        for n in range(5):
            g(f"s_waitcnt lgkmcnt({8-2*n})")
            for r in range(8): g(f"v_add_f32 v{48+r}, v{48+r}, v{R+8*n+r}")
    else:
        g("s_cmp_ge_u32 s3, 4"); g("s_cbranch_scc1 D_SB")
        slabw()
        g("s_barrier")
        g("s_branch D_SC")
        g("D_SB:")
        g("s_barrier")
        if F2DBG: ST(9)
        slabw()
        g("D_SC:")
        g("v_and_b32 v5, 31, v60")
        g(f"v_mul_u32_u24 v5, {SLAB_ROW}, v5")
        g("v_lshl_add_u32 v5, v61, 5, v5")
        g("v_lshrrev_b32 v6, 5, v60")
        g(f"v_mul_u32_u24 v6, {SLAB_RT}, v6")
        g("v_add_u32 v5, v5, v6")
        g(f"v_add_u32 v6, {4*SLAB_SZ}, v5")
        for d in range(2):
            g(f"v_lshlrev_b32 v{48+2*d}, 16, v{HR+d}")
            g(f"v_and_b32 v{49+2*d}, 0xffff0000, v{HR+d}")
            g(f"v_lshlrev_b32 v{52+2*d}, 16, v{HR+2+d}")
            g(f"v_and_b32 v{53+2*d}, 0xffff0000, v{HR+2+d}")
        g("s_waitcnt lgkmcnt(0)")
        if F2DBG: ST(10)
        g("s_barrier")
        if F2DBG: ST(11)
        R = 100
        def rd(q):
            v = 5 if q < 4 else 6
            g(f"ds_read_b128 v[{R+8*q}:{R+8*q+3}], v{v} offset:{(q&3)*SLAB_SZ}")
            g(f"ds_read_b128 v[{R+8*q+4}:{R+8*q+7}], v{v} offset:{(q&3)*SLAB_SZ+16}")
        for q in range(7): rd(q)
        for q in range(8):
            if q == 0:
                g("s_waitcnt lgkmcnt(12)"); rd(7)
                g("s_waitcnt lgkmcnt(14)")
            else:
                g(f"s_waitcnt lgkmcnt({14-2*q})")
            for r in range(8):
                g(f"v_add_f32 v{48+r}, v{48+r}, v{R+8*q+r}")
    for rr in range(4):
        g(f"v_cvt_pk_bf16_f32 v{56+rr}, v{48+rr}, v{52+rr}")
    g("buffer_store_dwordx4 v[56:59], v62, s[20:23], s53 offen")
```
